```python
import torch

def _softmax(x, axis=-1):
    return torch.softmax(x, dim=axis)

def _gelu(x):
    return torch.nn.functional.gelu(x, approximate='tanh')

def _silu(x):
    return torch.nn.functional.silu(x)

def _sigmoid(x):
    return torch.sigmoid(x)

def _layernorm(x, axis=-1, eps=1e-05):
    m = x.mean(dim=axis, keepdim=True)
    v = x.var(dim=axis, keepdim=True, unbiased=False)
    return (x - m) / torch.sqrt(v + eps)

def _scatter_add(tgt, idx, src, axis=0):
    return tgt.clone().index_add_(axis, idx, src)

def _segment_sum(src, seg, n):
    out = torch.zeros((n,) + src.shape[1:], dtype=src.dtype)
    return out.index_add_(0, seg, src)

def _pad(x, pw):
    flat = tuple((v for pair in reversed(pw) for v in pair))
    return torch.nn.functional.pad(x, flat)
kernel_name = 'standalone__tree_speculative_verify_tree_attention_over_candidate_token_tree__decode'

def setup_inputs():

    _w = lambda a: (lambda t: t.to(torch.bfloat16) if t.is_floating_point() else t)(torch.as_tensor(a))
    B, Hq, Hkv, T, C, D = (1, 32, 16, 1, 65536, 128)
    tree_mask = torch.zeros((B, T, T), dtype=float)
    for b in range(B):
        parent = torch.zeros(T, dtype=torch.int64)
        for i in range(1, T):
            parent[i] = int(torch.randint(0, i, (1,)).item())
        for i in range(T):
            j = i
            tree_mask[b, i, j] = 1.0
            while j > 0:
                j = parent[j]
                tree_mask[b, i, j] = 1.0
    return {'q': _w((lambda *s: torch.randn(*s, dtype=torch.bfloat16) * 0.8)(B, Hq, T, D)), 'k_cache': _w((lambda *s: torch.randn(*s, dtype=torch.bfloat16) * 0.8)(B, Hkv, C, D)), 'v_cache': _w((lambda *s: torch.randn(*s, dtype=torch.bfloat16) * 0.05)(B, Hkv, C, D)), 'k_tree': _w((lambda *s: torch.randn(*s, dtype=torch.bfloat16) * 0.8)(B, Hkv, T, D)), 'v_tree': _w((lambda *s: torch.randn(*s, dtype=torch.bfloat16) * 0.05)(B, Hkv, T, D)), 'tree_mask': _w(tree_mask)}

def reference(q, k_cache, v_cache, k_tree, v_tree, tree_mask):
    B, Hq, T, D = q.shape
    Hkv, C = (k_cache.shape[1], k_cache.shape[2])
    rep = Hq // Hkv
    kc = (lambda x, n, axis: torch.repeat_interleave(x, n, dim=axis))(k_cache, rep, axis=1)
    vc = (lambda x, n, axis: torch.repeat_interleave(x, n, dim=axis))(v_cache, rep, axis=1)
    kt = (lambda x, n, axis: torch.repeat_interleave(x, n, dim=axis))(k_tree, rep, axis=1)
    vt = (lambda x, n, axis: torch.repeat_interleave(x, n, dim=axis))(v_tree, rep, axis=1)
    k = torch.concatenate([kc, kt], axis=2)
    v = torch.concatenate([vc, vt], axis=2)
    scale = D ** (-0.5)
    scores = torch.einsum('bhqd,bhkd->bhqk', q, k) * scale
    ctx_mask = torch.ones((B, 1, T, C), dtype=scores.dtype)
    tm = tree_mask[:, None, :, :].clone()
    full_mask = torch.concatenate([ctx_mask, tm], axis=-1)
    scores = scores + (1.0 - full_mask) * -1000000000.0
    p = _softmax(scores, axis=-1)
    return torch.einsum('bhqk,bhkd->bhqd', p, v)
```

```python
import argparse
import struct

NAME = "standalone__tree_speculative_verify_tree_attention_over_candidate_token_tree__decode"
HKV = 16
C = 65536
HEAD_BYTES = C * 256
SUB = 4096


def f32(x):
    return "0x%08x" % struct.unpack("<I", struct.pack("<f", x))[0]


class Regs:
    def __init__(self, start):
        self.n = start

    def take(self, cnt, align=1):
        self.n = (self.n + align - 1) // align * align
        r = self.n
        self.n += cnt
        return r


def vr(a, n=1):
    return f"v{a}" if n == 1 else f"v[{a}:{a + n - 1}]"


def sr(a, n=1):
    return f"s{a}" if n == 1 else f"s[{a}:{a + n - 1}]"


def gen(nwg=256, w=8, g=2, ng=2, mapping="a", kflags="nt", vflags="nt", lds=None,
        stamps=False, nocompute=False):
    wgph = nwg // HKV
    nsub = (HKV * C // 16) // (nwg * w)
    ngroups = nsub // g
    assert ngroups % ng == 0 and ngroups >= 2 * ng
    L = 4 * g
    assert (2 * ng) * L <= 63 + L
    lds_need = w * 1536
    if lds is None or lds < lds_need:
        lds = lds_need
    if mapping == "a":
        chunk_stride, wave_stride, gstride = HEAD_BYTES // wgph, g * SUB, w * g * SUB
    elif mapping == "b":
        chunk_stride, wave_stride, gstride = HEAD_BYTES // wgph, nsub * SUB, g * SUB
    elif mapping == "c":
        chunk_stride, wave_stride, gstride = w * g * SUB, g * SUB, wgph * w * g * SUB
    else:
        raise ValueError(mapping)
    lg_wgph = wgph.bit_length() - 1
    scale = 128 ** -0.5
    cexp = scale * 1.4426950408889634

    o = []
    e = o.append

    sQ, sKp, sVp, sKT, sVT, sMK, sOUT, sDBG, sWS = 4, 6, 8, 10, 12, 14, 16, 18, 20
    sK, sV, sX, sY = 24, 28, 32, 36
    sHEAD, sCH, sWAVE, sC, sCNT, sT0, sT1, sMASK = 40, 41, 42, 43, 44, 45, 46, 47
    sOFF = 48
    sTS = 56
    sSAVE = 64

    R = Regs(1)
    vLane = R.take(1)
    vKo = R.take(1)
    vVo = R.take(1)
    vM = R.take(1)
    vMc = R.take(1)
    vT = R.take(4, 2)
    vML = R.take(2, 2)
    vL = vML + 1
    vAcc = R.take(4, 4)
    vSel = R.take(8, 4)
    vQ = R.take(16, 4)
    vS = R.take(4 * g, 4)
    vP = R.take(2 * g, 2)
    vB = R.take(8, 4)
    vKT = R.take(16, 4)
    vVT = R.take(4, 4)
    ring = R.take(32 * g * ng, 4)
    nv = R.n
    nv = max(nv, ring + 6 * max(w, wgph))
    assert nv <= 256, nv

    def kreg(slot, u, j):
        return ring + (slot * g + u) * 32 + j * 4

    def vreg(slot, u, i):
        return ring + (slot * g + u) * 32 + 16 + i * 4

    e(f"; @launch grid=({nwg},1,1) block=({w * 64},1,1) lds={lds}")
    e('.amdgcn_target "amdgcn-amd-amdhsa--gfx950"')
    e(".text")
    e(f".globl {NAME}_kernel")
    e(".p2align 8")
    e(f".type {NAME}_kernel,@function")
    e(f"{NAME}_kernel:")
    e(f"    s_cmp_ge_u32 s2, {nwg}")
    e("    s_cbranch_scc1 L_end")
    e("    s_load_dwordx16 s[4:19], s[0:1], 0")
    e("    s_load_dwordx2 s[20:21], s[0:1], 64")
    if stamps:
        e(f"    s_memrealtime {sr(sTS, 2)}")
    e(f"    v_lshrrev_b32 {vr(vT)}, 6, v0")
    e(f"    v_and_b32 {vr(vLane)}, 63, v0")
    e(f"    v_readfirstlane_b32 {sr(sWAVE)}, {vr(vT)}")
    e(f"    s_lshr_b32 {sr(sHEAD)}, s2, {lg_wgph}")
    e(f"    s_and_b32 {sr(sCH)}, s2, {wgph - 1}")
    e(f"    v_and_b32 {vr(vT)}, 15, {vr(vLane)}")
    e(f"    v_lshrrev_b32 {vr(vT + 1)}, 4, {vr(vLane)}")
    e(f"    v_lshlrev_b32 {vr(vKo)}, 8, {vr(vT)}")
    e(f"    v_lshl_add_u32 {vr(vKo)}, {vr(vT + 1)}, 4, {vr(vKo)}")
    e(f"    v_lshlrev_b32 {vr(vVo)}, 4, {vr(vT)}")
    e(f"    v_lshl_add_u32 {vr(vVo)}, {vr(vT + 1)}, 10, {vr(vVo)}")
    e(f"    v_bfe_u32 {vr(vT + 2)}, {vr(vLane)}, 3, 1")
    e(f"    v_lshlrev_b32 {vr(vT + 2)}, 8, {vr(vT + 2)}")
    e(f"    v_lshl_add_u32 {vr(vT + 2)}, {vr(vT + 1)}, 4, {vr(vT + 2)}")
    e(f"    s_mul_i32 {sr(sT0)}, {sr(sCH)}, {chunk_stride}")
    e(f"    s_mul_i32 {sr(sT1)}, {sr(sWAVE)}, {wave_stride}")
    e(f"    s_add_u32 {sr(sOFF)}, {sr(sT0)}, {sr(sT1)}")
    for u in range(1, g):
        e(f"    s_add_u32 {sr(sOFF + u)}, {sr(sOFF)}, {u * SUB}")
    e(f"    s_lshl_b32 {sr(sT0)}, {sr(sHEAD)}, 24")
    e(f"    s_lshl_b32 {sr(sT1)}, {sr(sHEAD)}, 9")
    e(f"    s_mov_b32 {sr(sK + 2)}, {HEAD_BYTES}")
    e(f"    s_mov_b32 {sr(sK + 3)}, 0x20000")
    e(f"    s_mov_b32 {sr(sV + 2)}, {HEAD_BYTES}")
    e(f"    s_mov_b32 {sr(sV + 3)}, 0x20000")
    e(f"    s_mov_b32 {sr(sX + 2)}, 512")
    e(f"    s_mov_b32 {sr(sX + 3)}, 0x20000")
    e(f"    s_mov_b32 {sr(sY + 2)}, 256")
    e(f"    s_mov_b32 {sr(sY + 3)}, 0x20000")
    e(f"    s_mov_b32 {sr(sC)}, {f32(cexp)}")
    e("    s_waitcnt lgkmcnt(0)")
    e(f"    s_add_u32 {sr(sK)}, {sr(sKp)}, {sr(sT0)}")
    e(f"    s_addc_u32 {sr(sK + 1)}, {sr(sKp + 1)}, 0")
    e(f"    s_add_u32 {sr(sV)}, {sr(sVp)}, {sr(sT0)}")
    e(f"    s_addc_u32 {sr(sV + 1)}, {sr(sVp + 1)}, 0")
    e(f"    s_add_u32 {sr(sX)}, {sr(sQ)}, {sr(sT1)}")
    e(f"    s_addc_u32 {sr(sX + 1)}, {sr(sQ + 1)}, 0")
    for j in range(4):
        e(f"    buffer_load_dwordx4 {vr(vQ + 4 * j, 4)}, {vr(vT + 2)}, {sr(sX, 4)}, 0 offen offset:{64 * j}")
    e(f"    s_or_b32 {sr(sT0)}, {sr(sCH)}, {sr(sWAVE)}")
    e(f"    s_cmp_lg_u32 {sr(sT0)}, 0")
    e("    s_cbranch_scc1 L_no_tree_load")
    e(f"    s_lshl_b32 {sr(sT1)}, {sr(sHEAD)}, 8")
    e(f"    s_add_u32 {sr(sY)}, {sr(sKT)}, {sr(sT1)}")
    e(f"    s_addc_u32 {sr(sY + 1)}, {sr(sKT + 1)}, 0")
    for j in range(4):
        e(f"    buffer_load_dwordx4 {vr(vKT + 4 * j, 4)}, {vr(vKo)}, {sr(sY, 4)}, 0 offen offset:{64 * j}")
    e(f"    s_add_u32 {sr(sX)}, {sr(sVT)}, {sr(sT1)}")
    e(f"    s_addc_u32 {sr(sX + 1)}, {sr(sVT + 1)}, 0")
    e(f"    s_mov_b32 {sr(sX + 2)}, 256")
    e(f"    buffer_load_dwordx4 {vr(vVT, 4)}, {vr(vVo)}, {sr(sX, 4)}, 0 offen")
    e(f"    s_mov_b32 {sr(sY)}, {sr(sMK)}")
    e(f"    s_mov_b32 {sr(sY + 1)}, {sr(sMK + 1)}")
    e(f"    s_mov_b32 {sr(sY + 2)}, 2")
    e(f"    buffer_load_ushort {vr(vT + 3)}, off, {sr(sY, 4)}, 0")
    e("L_no_tree_load:")

    def issue_k(slot):
        for u in range(g):
            for j in range(4):
                e(f"    buffer_load_dwordx4 {vr(kreg(slot, u, j), 4)}, {vr(vKo)}, {sr(sK, 4)}, {sr(sOFF + u)} offen offset:{64 * j} {kflags}")

    def issue_v(slot):
        for u in range(g):
            for i in range(4):
                e(f"    buffer_load_dwordx4 {vr(vreg(slot, u, i), 4)}, {vr(vVo)}, {sr(sV, 4)}, {sr(sOFF + u)} offen offset:{256 * i} {vflags}")

    def advance():
        for u in range(g):
            e(f"    s_add_u32 {sr(sOFF + u)}, {sr(sOFF + u)}, {gstride}")

    for slot in range(ng):
        issue_k(slot)
        issue_v(slot)
        advance()

    e(f"    v_and_b32 {vr(vT)}, 1, {vr(vLane)}")
    e(f"    v_bfe_u32 {vr(vT + 1)}, {vr(vLane)}, 1, 2")
    e(f"    v_cmp_eq_u32 vcc, 1, {vr(vT)}")
    e(f"    v_mov_b32 {vr(vB)}, 0x0c0c0100")
    e(f"    v_mov_b32 {vr(vB + 1)}, 0x01000c0c")
    e(f"    v_mov_b32 {vr(vB + 2)}, 0x0c0c0302")
    e(f"    v_mov_b32 {vr(vB + 3)}, 0x03020c0c")
    e(f"    v_mov_b32 {vr(vB + 4)}, 0x0c0c0c0c")
    e(f"    v_cndmask_b32 {vr(vB)}, {vr(vB)}, {vr(vB + 1)}, vcc")
    e(f"    v_cndmask_b32 {vr(vB + 2)}, {vr(vB + 2)}, {vr(vB + 3)}, vcc")
    for t in range(4):
        e(f"    v_cmp_eq_u32 vcc, {t}, {vr(vT + 1)}")
        e("    s_nop 1")
        e(f"    v_cndmask_b32 {vr(vSel + t)}, {vr(vB + 4)}, {vr(vB)}, vcc")
        e(f"    v_cndmask_b32 {vr(vSel + 4 + t)}, {vr(vB + 4)}, {vr(vB + 2)}, vcc")
    e(f"    v_mov_b32 {vr(vM)}, 0xff800000")
    e(f"    v_mov_b32 {vr(vMc)}, 0xff800000")
    e(f"    v_mov_b32 {vr(vL)}, 0")
    for j in range(4):
        e(f"    v_mov_b32 {vr(vAcc + j)}, 0")

    def xmax(reg, tmp, op="v_max_f32"):
        e(f"    v_mov_b32 {vr(tmp)}, {vr(reg)}")
        e("    s_nop 1")
        e(f"    v_permlane32_swap_b32 {vr(reg)}, {vr(tmp)}")
        e("    s_nop 1")
        e(f"    {op} {vr(reg)}, {vr(reg)}, {vr(tmp)}")
        e(f"    v_mov_b32 {vr(tmp)}, {vr(reg)}")
        e("    s_nop 1")
        e(f"    v_permlane16_swap_b32 {vr(reg)}, {vr(tmp)}")
        e("    s_nop 1")
        e(f"    {op} {vr(reg)}, {vr(reg)}, {vr(tmp)}")

    e(f"    s_waitcnt vmcnt({min(63, 2 * ng * L)})")
    e(f"    s_or_b32 {sr(sT0)}, {sr(sCH)}, {sr(sWAVE)}")
    e(f"    s_cmp_lg_u32 {sr(sT0)}, 0")
    e("    s_cbranch_scc1 L_no_tree")
    for j in range(4):
        c = "0" if j == 0 else vr(vS, 4)
        e(f"    v_mfma_f32_16x16x32_bf16 {vr(vS, 4)}, {vr(vKT + 4 * j, 4)}, {vr(vQ + 4 * j, 4)}, {c}")
    e(f"    v_lshlrev_b32 {vr(vT + 3)}, 16, {vr(vT + 3)}")
    e(f"    v_sub_f32 {vr(vT + 3)}, 1.0, {vr(vT + 3)}")
    e(f"    v_mul_f32 {vr(vT + 3)}, {f32(-1e9 / scale)}, {vr(vT + 3)}")
    e(f"    v_cmp_gt_u32 vcc, 16, {vr(vLane)}")
    e("    s_nop 7")
    e(f"    v_add_f32 {vr(vS)}, {vr(vS)}, {vr(vT + 3)}")
    e(f"    v_cndmask_b32 {vr(vS)}, {vr(vM)}, {vr(vS)}, vcc")
    e(f"    v_mov_b32 {vr(vM)}, {vr(vS)}")
    xmax(vM, vT)
    e(f"    v_mul_f32 {vr(vMc)}, {sr(sC)}, {vr(vM)}")
    e(f"    v_fma_f32 {vr(vS)}, {vr(vS)}, {sr(sC)}, -{vr(vMc)}")
    e(f"    v_exp_f32 {vr(vL)}, {vr(vS)}")
    e("    s_nop 0")
    e(f"    v_cvt_pk_bf16_f32 {vr(vP)}, {vr(vL)}, {vr(vL)}")
    for t in range(4):
        e(f"    v_perm_b32 {vr(vB + t)}, {vr(vP)}, {vr(vP)}, {vr(vSel + t)}")
    e("    s_nop 1")
    e(f"    v_mfma_f32_16x16x32_bf16 {vr(vAcc, 4)}, {vr(vVT, 4)}, {vr(vB, 4)}, {vr(vAcc, 4)}")
    e("L_no_tree:")

    lab = [0]

    def group(slot, wk, wv, loads):
        e(f"    s_waitcnt vmcnt({wk})")
        if not nocompute:
            for j in range(4):
                for u in range(g):
                    c = "0" if j == 0 else vr(vS + 4 * u, 4)
                    e(f"    v_mfma_f32_16x16x32_bf16 {vr(vS + 4 * u, 4)}, {vr(kreg(slot, u, j), 4)}, {vr(vQ + 4 * j, 4)}, {c}")
        if loads:
            issue_k(slot)
        if not nocompute:
            have = L if loads else 0
            if have < 8:
                e(f"    s_nop {8 - have - 1}")
            n = 4 * g
            e(f"    v_max3_f32 {vr(vT)}, {vr(vS)}, {vr(vS + 1)}, {vr(vS + 2)}")
            k = 3
            while k < n:
                if k + 1 < n:
                    e(f"    v_max3_f32 {vr(vT)}, {vr(vT)}, {vr(vS + k)}, {vr(vS + k + 1)}")
                    k += 2
                else:
                    e(f"    v_max_f32 {vr(vT)}, {vr(vT)}, {vr(vS + k)}")
                    k += 1
            lab[0] += 1
            skip = f"L_keep{lab[0]}"
            e(f"    v_cmp_gt_f32 vcc, {vr(vT)}, {vr(vM)}")
            e(f"    s_cbranch_vccz {skip}")
            e(f"    v_max_f32 {vr(vT)}, {vr(vT)}, {vr(vM)}")
            xmax(vT, vT + 1)
            e(f"    v_mul_f32 {vr(vT + 2)}, {sr(sC)}, {vr(vT)}")
            e(f"    v_sub_f32 {vr(vT + 1)}, {vr(vMc)}, {vr(vT + 2)}")
            e(f"    v_exp_f32 {vr(vT + 1)}, {vr(vT + 1)}")
            e(f"    v_mov_b32 {vr(vM)}, {vr(vT)}")
            e(f"    v_mov_b32 {vr(vMc)}, {vr(vT + 2)}")
            e(f"    v_mul_f32 {vr(vL)}, {vr(vL)}, {vr(vT + 1)}")
            for j in range(4):
                e(f"    v_mul_f32 {vr(vAcc + j)}, {vr(vAcc + j)}, {vr(vT + 1)}")
            e(f"{skip}:")
            for k in range(n):
                e(f"    v_fma_f32 {vr(vS + k)}, {vr(vS + k)}, {sr(sC)}, -{vr(vMc)}")
            for k in range(n):
                e(f"    v_exp_f32 {vr(vS + k)}, {vr(vS + k)}")
            e("    s_nop 0")
            for k in range(0, n, 2):
                e(f"    v_cvt_pk_bf16_f32 {vr(vP + k // 2)}, {vr(vS + k)}, {vr(vS + k + 1)}")
            for k in range(n):
                e(f"    v_add_f32 {vr(vL)}, {vr(vL)}, {vr(vS + k)}")

            def perms(k):
                for t in range(4):
                    e(f"    v_perm_b32 {vr(vB + 4 * (k & 1) + t)}, {vr(vP + k // 2)}, {vr(vP + k // 2)}, {vr(vSel + 4 * (k & 1) + t)}")
            perms(0)
        e(f"    s_waitcnt vmcnt({wv})")
        if not nocompute:
            for k in range(n):
                if k + 1 < n:
                    perms(k + 1)
                else:
                    e("    s_nop 1")
                e(f"    v_mfma_f32_16x16x32_bf16 {vr(vAcc, 4)}, {vr(vreg(slot, k // 4, k % 4), 4)}, {vr(vB + 4 * (k & 1), 4)}, {vr(vAcc, 4)}")
        if loads:
            issue_v(slot)
            advance()

    e(f"    s_mov_b32 {sr(sCNT)}, {ngroups // ng - 1}")
    e(".p2align 3")
    e("L_loop:")
    for slot in range(ng):
        group(slot, (2 * ng - 1) * L, (2 * ng - 1) * L, True)
    e(f"    s_sub_u32 {sr(sCNT)}, {sr(sCNT)}, 1")
    e(f"    s_cmp_lg_u32 {sr(sCNT)}, 0")
    e("    s_cbranch_scc1 L_loop")
    for slot in range(ng):
        rem = ng - slot
        group(slot, (2 * rem - 1) * L, (2 * rem - 2) * L, False)
    if stamps:
        e(f"    s_memrealtime {sr(sTS + 2, 2)}")

    xmax(vL, vT, "v_add_f32")
    e(f"    v_mov_b32 {vr(vML)}, {vr(vMc)}")
    e(f"    s_mul_i32 {sr(sT0)}, {sr(sWAVE)}, 1536")
    e(f"    v_lshlrev_b32 {vr(vKo)}, 4, {vr(vLane)}")
    e(f"    v_lshlrev_b32 {vr(vVo)}, 3, {vr(vLane)}")
    e(f"    v_add_u32 {vr(vT)}, {sr(sT0)}, {vr(vKo)}")
    e(f"    v_add_u32 {vr(vT + 1)}, {sr(sT0)}, {vr(vVo)}")
    e(f"    ds_write_b128 {vr(vT)}, {vr(vAcc, 4)}")
    e(f"    ds_write_b64 {vr(vT + 1)}, {vr(vML, 2)} offset:1024")
    e("    s_waitcnt lgkmcnt(0)")
    e("    s_barrier")
    e(f"    s_cmp_lg_u32 {sr(sWAVE)}, 0")
    e("    s_cbranch_scc1 L_fin")

    def combine(n):
        a0, m0 = ring, ring + 4 * n
        e(f"    v_max3_f32 {vr(vML)}, {vr(m0)}, {vr(m0 + 2)}, {vr(m0 + 4)}")
        k = 3
        while k < n:
            if k + 1 < n:
                e(f"    v_max3_f32 {vr(vML)}, {vr(vML)}, {vr(m0 + 2 * k)}, {vr(m0 + 2 * k + 2)}")
                k += 2
            else:
                e(f"    v_max_f32 {vr(vML)}, {vr(vML)}, {vr(m0 + 2 * k)}")
                k += 1
        for i in range(n):
            e(f"    v_sub_f32 {vr(m0 + 2 * i)}, {vr(m0 + 2 * i)}, {vr(vML)}")
        for i in range(n):
            e(f"    v_exp_f32 {vr(m0 + 2 * i)}, {vr(m0 + 2 * i)}")
        e("    s_nop 0")
        e(f"    v_mul_f32 {vr(vL)}, {vr(m0)}, {vr(m0 + 1)}")
        for j in range(4):
            e(f"    v_mul_f32 {vr(vAcc + j)}, {vr(m0)}, {vr(a0 + j)}")
        for i in range(1, n):
            e(f"    v_fmac_f32 {vr(vL)}, {vr(m0 + 2 * i)}, {vr(m0 + 2 * i + 1)}")
            for j in range(4):
                e(f"    v_fmac_f32 {vr(vAcc + j)}, {vr(m0 + 2 * i)}, {vr(a0 + 4 * i + j)}")

    for i in range(w):
        e(f"    ds_read_b64 {vr(ring + 4 * w + 2 * i, 2)}, {vr(vVo)} offset:{i * 1536 + 1024}")
    for i in range(w):
        e(f"    ds_read_b128 {vr(ring + 4 * i, 4)}, {vr(vKo)} offset:{i * 1536}")
    e(f"    s_mul_i32 {sr(sT0)}, {sr(sHEAD)}, {wgph * 1536}")
    e(f"    s_add_u32 {sr(sX)}, {sr(sWS)}, {sr(sT0)}")
    e(f"    s_addc_u32 {sr(sX + 1)}, {sr(sWS + 1)}, 0")
    e(f"    s_mov_b32 {sr(sX + 2)}, {wgph * 1536}")
    e(f"    s_mul_i32 {sr(sT1)}, {sr(sCH)}, 1536")
    e(f"    s_mov_b32 {sr(sY)}, {sr(sDBG)}")
    e(f"    s_mov_b32 {sr(sY + 1)}, {sr(sDBG + 1)}")
    e(f"    s_mov_b32 {sr(sY + 2)}, 256")
    e("    s_waitcnt lgkmcnt(0)")
    combine(w)
    e(f"    buffer_store_dwordx4 {vr(vAcc, 4)}, {vr(vKo)}, {sr(sX, 4)}, {sr(sT1)} offen sc1")
    e(f"    buffer_store_dwordx2 {vr(vML, 2)}, {vr(vVo)}, {sr(sX, 4)}, {sr(sT1)} offen offset:1024 sc1")
    e(f"    s_lshl_b32 {sr(sT0)}, {sr(sHEAD)}, 2")
    e(f"    v_mov_b32 {vr(vT)}, 1")
    e("    s_waitcnt vmcnt(0)")
    e(f"    s_mov_b64 exec, 1")
    e(f"    buffer_atomic_add {vr(vT)}, off, {sr(sY, 4)}, {sr(sT0)} sc0")
    e("    s_waitcnt vmcnt(0)")
    e(f"    v_readfirstlane_b32 {sr(sT0)}, {vr(vT)}")
    e(f"    s_mov_b64 exec, -1")
    e(f"    s_cmp_lg_u32 {sr(sT0)}, {wgph - 1}")
    e("    s_cbranch_scc1 L_fin")
    e(f"    s_mov_b32 {sr(sT1)}, 0")
    for i in range(wgph):
        e(f"    buffer_load_dwordx2 {vr(ring + 4 * wgph + 2 * i, 2)}, {vr(vVo)}, {sr(sX, 4)}, {sr(sT1)} offen offset:1024 sc1")
        e(f"    buffer_load_dwordx4 {vr(ring + 4 * i, 4)}, {vr(vKo)}, {sr(sX, 4)}, {sr(sT1)} offen sc1")
        if i + 1 < wgph:
            e(f"    s_add_u32 {sr(sT1)}, {sr(sT1)}, 1536")
    e(f"    s_lshl_b32 {sr(sT0)}, {sr(sHEAD)}, 9")
    e(f"    s_add_u32 {sr(sY)}, {sr(sOUT)}, {sr(sT0)}")
    e(f"    s_addc_u32 {sr(sY + 1)}, {sr(sOUT + 1)}, 0")
    e(f"    s_mov_b32 {sr(sY + 2)}, 512")
    e(f"    v_bfe_u32 {vr(vT)}, {vr(vLane)}, 3, 1")
    e(f"    v_lshlrev_b32 {vr(vT)}, 8, {vr(vT)}")
    e(f"    v_lshrrev_b32 {vr(vT + 1)}, 4, {vr(vLane)}")
    e(f"    v_lshl_add_u32 {vr(vT)}, {vr(vT + 1)}, 6, {vr(vT)}")
    e(f"    v_and_b32 {vr(vT + 1)}, 7, {vr(vLane)}")
    e(f"    v_lshl_add_u32 {vr(vT)}, {vr(vT + 1)}, 1, {vr(vT)}")
    e("    s_waitcnt vmcnt(0)")
    combine(wgph)
    e(f"    v_rcp_f32 {vr(vL)}, {vr(vL)}")
    e("    s_nop 0")
    for j in range(4):
        e(f"    v_mul_f32 {vr(vAcc + j)}, {vr(vAcc + j)}, {vr(vL)}")
    e(f"    v_cvt_pk_bf16_f32 {vr(vP)}, {vr(vAcc)}, {vr(vAcc + 1)}")
    e(f"    v_cvt_pk_bf16_f32 {vr(vP + 1)}, {vr(vAcc + 2)}, {vr(vAcc + 3)}")
    e(f"    buffer_store_short {vr(vP)}, {vr(vT)}, {sr(sY, 4)}, 0 offen")
    e(f"    buffer_store_short_d16_hi {vr(vP)}, {vr(vT)}, {sr(sY, 4)}, 0 offen offset:16")
    e(f"    buffer_store_short {vr(vP + 1)}, {vr(vT)}, {sr(sY, 4)}, 0 offen offset:32")
    e(f"    buffer_store_short_d16_hi {vr(vP + 1)}, {vr(vT)}, {sr(sY, 4)}, 0 offen offset:48")
    e("L_fin:")
    if stamps:
        e("    s_waitcnt vmcnt(0)")
        e(f"    s_memrealtime {sr(sTS + 4, 2)}")
        e(f"    s_getreg_b32 {sr(sTS + 6)}, hwreg(HW_REG_HW_ID)")
        e(f"    s_getreg_b32 {sr(sTS + 7)}, hwreg(HW_REG_XCC_ID)")
        e(f"    s_mul_i32 {sr(sT0)}, s2, {w}")
        e(f"    s_add_u32 {sr(sT0)}, {sr(sT0)}, {sr(sWAVE)}")
        e(f"    s_lshl_b32 {sr(sT0)}, {sr(sT0)}, 5")
        e(f"    s_add_u32 {sr(sX)}, {sr(sWS)}, 0x100000")
        e(f"    s_addc_u32 {sr(sX + 1)}, {sr(sWS + 1)}, 0")
        e(f"    s_mov_b32 {sr(sX + 2)}, 0x100000")
        e("    s_waitcnt lgkmcnt(0)")
        for k in range(8):
            e(f"    v_mov_b32 {vr(ring + k)}, {sr(sTS + k)}")
        e("    s_mov_b64 exec, 1")
        e(f"    buffer_store_dwordx4 {vr(ring, 4)}, off, {sr(sX, 4)}, {sr(sT0)}")
        e(f"    buffer_store_dwordx4 {vr(ring + 4, 4)}, off, {sr(sX, 4)}, {sr(sT0)} offset:16")
    e("L_end:")
    e("    s_endpgm")
    e('.section .rodata,"a"')
    e(".p2align 6")
    e(f".amdhsa_kernel {NAME}_kernel")
    e(f"  .amdhsa_next_free_vgpr {nv}")
    e("  .amdhsa_next_free_sgpr 72")
    e(f"  .amdhsa_accum_offset {(nv + 3) // 4 * 4}")
    e("  .amdhsa_group_segment_fixed_size 0")
    e("  .amdhsa_kernarg_size 72")
    e("  .amdhsa_user_sgpr_count 2")
    e("  .amdhsa_user_sgpr_kernarg_segment_ptr 1")
    e("  .amdhsa_system_sgpr_workgroup_id_x 1")
    e("  .amdhsa_float_denorm_mode_32 3")
    e(".end_amdhsa_kernel")
    return "\n".join(o) + "\n"


if __name__ == "__main__":
    ap = argparse.ArgumentParser()
    ap.add_argument("-o", default="/dev/stdout")
    ap.add_argument("--nwg", type=int, default=256)
    ap.add_argument("--w", type=int, default=8)
    ap.add_argument("--g", type=int, default=2)
    ap.add_argument("--ng", type=int, default=2)
    ap.add_argument("--mapping", default="a")
    ap.add_argument("--kflags", default="nt")
    ap.add_argument("--vflags", default="nt")
    ap.add_argument("--lds", type=int, default=None)
    ap.add_argument("--stamps", action="store_true")
    ap.add_argument("--nocompute", action="store_true")
    a = ap.parse_args()
    open(a.o, "w").write(gen(a.nwg, a.w, a.g, a.ng, a.mapping, a.kflags, a.vflags, a.lds, a.stamps, a.nocompute))
```

```python
import struct
import sys

NAME = "standalone__tree_speculative_verify_tree_attention_over_candidate_token_tree__decode"
MiB = 1 << 20
NWG = 256
NR = 32
NIT = 32
SLOT = 1152
HW = 16 * SLOT + 2304
NEG_INF = "0xff800000"
ALL = "row_mask:0xf bank_mask:0xf"

HEADER = """\
;
; Workgroup w < 256 (one wave) owns 4096 keys of kv head w>>4 and serves both of its query heads.
;             number of its head merges the 16 records, normalises and writes the output
; The loops exist in three copies that differ only in how many loads stay in flight.  Progress words in
; Workgroup 256 clears the counters in the workspace and then raises a flag in d_debug."""


def f32(x):
    return "0x%08x" % struct.unpack("<I", struct.pack("<f", x))[0]


class Regs:
    def __init__(self, start):
        self.n = start

    def take(self, cnt, align=1):
        self.n = (self.n + align - 1) // align * align
        r = self.n
        self.n += cnt
        return r


def vr(a, n=1):
    return f"v{a}" if n == 1 else f"v[{a}:{a + n - 1}]"


def sr(a, n=1):
    return f"s{a}" if n == 1 else f"s[{a}:{a + n - 1}]"


def gen(RK="19.21h.25", RV=None, rd=16, use=14, lo=6, hi=3, T=3, t0=6, kp=3, dn=1, off=0, rot=5,
        cs="2.3.0.4.3.6.2", ea=16, s0=30, early=1, stamps=0, mini=0, trace=0, table=0, amp="", ampwg=77, ampbase=0, ampx=20, ampfrom=-1, dw=5, first=4, near=1, dbl=0, gap=0, gm=0, al=6, esc=0, mem=3, dh=0, ps=0, fl="nt"):
    def windows(spec):
        return [(int(x.rstrip("h")), int(x.rstrip("h")) + x.endswith("h")) for x in str(spec).split(".")]

    RK = windows(RK)
    RV = windows(RV) if RV else RK
    D = max(max(x) for x in RK + RV) + 1
    assert D <= NR and (use - 3 + NR - rd) > D and use >= 3 and 26 <= s0 <= NR and ps < rd and use - 2 != 25
    cs = ([int(x) for x in cs.split(".")] + [0] * 7)[:7]
    hsh = [sum(c for i, c in enumerate(cs[:4]) if h >> i & 1) for h in range(16)]
    xsh = [sum(c for i, c in enumerate(cs[4:]) if x >> i & 1) for x in range(8)]
    assert max(hsh) < 16 and max(xsh) < 256
    scale = 128 ** -0.5
    cexp = scale * 1.4426950408889634
    slot = 1024
    t0m = t0 - 1
    if table:
        lo, hi, kp, dn, off, T, t0m, mem = (f"s{80 + i}" for i in range(8))

    o = []
    e = o.append

    sQ, sKp, sVp, sKT, sVT, sMK, sOUT, sDBG, sWS = 4, 6, 8, 10, 12, 14, 16, 18, 20
    sS, sW, sY, sPR, sPW, sPB = 24, 28, 32, 36, 40, 44
    sHEAD, sCH, sC, sIT, sT0, sT1, sBASE, sO, sB0, sREG, sVB = 48, 49, 50, 51, 52, 53, 54, 55, 56, 57, 58
    sAH, sBH, sBI, sBL, sTK, sTB, sAT, sNM, sREC = 60, 61, 62, 63, 64, 65, 66, 67, 68
    sTAB = 70
    sTS, sTR, sACC = 88, 96, 98

    R = Regs(1)
    vOff = R.take(1)
    vLin = R.take(1)
    vLds = R.take(1)
    vML = R.take(2, 2)
    vMc, vL = vML, vML + 1
    vT = R.take(4, 2)
    vMax = R.take(1)
    vXa = R.take(1)
    vXb = R.take(1)
    vXT = R.take(1)
    vE = R.take(1)
    vP = R.take(1)
    vBc = R.take(1)
    vPo = R.take(1)
    vPg = R.take(1)
    vPs = R.take(1)
    vFl = R.take(1)
    vTr = R.take(1)
    vX = R.take(4, 4)
    vAcc = R.take(4, 4)
    vSel = R.take(4, 4)
    vQ = R.take(8, 4)
    vD = R.take(16, 4)
    vB = vD
    vVT = R.take(4, 4)
    vKT = R.take(4, 4)
    ring = R.take(4 * NR, 4)
    nv = R.n
    vLane = 0

    def rg(k):
        return vr(ring + 4 * k, 4)

    def load(k):
        e(f"    buffer_load_dwordx4 {rg(k)}, {vr(vOff)}, {sr(sS, 4)}, {sr(sO)} offen offset:{(k % 4) * 1024} {fl}")

    def setoff(k, base):
        if k % 4 == 0:
            e(f"    s_add_u32 {sr(sO)}, {sr(base)}, {sr(sTAB + k // 4)}")
            e(f"    s_and_b32 {sr(sO)}, {sr(sO)}, {2 * MiB - 1:#x}")

    def tab(u):
        e(f"    s_add_u32 {sr(sT0)}, {sr(sTAB)}, {u * 4096:#x}")
        e(f"    s_and_b32 {sr(sT1)}, {sr(sT0)}, 0x8000")
        e(f"    s_add_u32 {sr(sTAB + u)}, {sr(sT0)}, {sr(sT1)}")

    e(HEADER)
    e(f"; @launch grid=({NWG + 1},1,1) block=(64,1,1) lds={NIT * slot}")
    e('.amdgcn_target "amdgcn-amd-amdhsa--gfx950"')
    e(".text")
    e(f".globl {NAME}_kernel")
    e(".p2align 8")
    e(f".type {NAME}_kernel,@function")
    e(f"{NAME}_kernel:")
    e("    s_load_dwordx16 s[4:19], s[0:1], 0")
    e("    s_load_dwordx2 s[20:21], s[0:1], 64")
    if stamps or mini or amp:
        e(f"    s_memrealtime {sr(sTS, 2)}")

    def mark(name):
        if amp == name:
            e(f"    s_memrealtime {sr(sTS + 2, 2)}")
    e(f"    s_cmp_ge_u32 s2, {NWG}")
    e("    s_cbranch_scc1 L_extra")
    if dw:
        e("    ; each workgroup reads a few lines of this code as data, so that first executions find it in L2")
        e(f"    s_getpc_b64 {sr(sAH, 2)}")
        e("L_pc0:")
        e(f"    s_lshr_b32 {sr(sT0)}, s2, 3")
        e(f"    s_mul_i32 {sr(sT0)}, {sr(sT0)}, {dw * 128}")
        e(f"    v_lshl_add_u32 {vr(vML)}, {vr(vLane)}, 7, {sr(sT0)}")
        e(f"    v_min_u32 {vr(vML)}, L_code_end-L_pc0-4, {vr(vML)}")
        e(f"    v_mov_b32 {vr(vML + 1)}, 0")
        e(f"    v_lshl_add_u64 {vr(vML, 2)}, {vr(vML, 2)}, 0, {sr(sAH, 2)}")
        e(f"    s_mov_b64 exec, {(1 << dw) - 1}")
        e(f"    global_load_dword {vr(vBc)}, {vr(vML, 2)}, off")
        e("    s_mov_b64 exec, -1")
    e("    ; workgroups w and w^8 share a 2 MiB region in alternating 32 KiB blocks; each pair starts its walk")
    e("    ; a few 4 KiB steps into the region and wraps at its end")
    e(f"    s_lshr_b32 {sr(sHEAD)}, s2, 4")
    e(f"    s_and_b32 {sr(sBL)}, s2, 7")
    hw = sum(v << (4 * h) for h, v in enumerate(hsh))
    e(f"    s_mov_b32 {sr(sT0)}, {hw & 0xffffffff:#x}")
    e(f"    s_mov_b32 {sr(sT1)}, {hw >> 32:#x}")
    e(f"    s_lshl_b32 {sr(sO)}, {sr(sHEAD)}, 2")
    e(f"    s_lshr_b64 {sr(sT0, 2)}, {sr(sT0, 2)}, {sr(sO)}")
    e(f"    s_and_b32 {sr(sTAB)}, {sr(sT0)}, 15")
    if any(xsh):
        xw = sum(v << (8 * x) for x, v in enumerate(xsh))
        e(f"    s_mov_b32 {sr(sT0)}, {xw & 0xffffffff:#x}")
        e(f"    s_mov_b32 {sr(sT1)}, {xw >> 32:#x}")
        e(f"    s_lshl_b32 {sr(sO)}, {sr(sBL)}, 3")
        e(f"    s_lshr_b64 {sr(sT0, 2)}, {sr(sT0, 2)}, {sr(sO)}")
        e(f"    s_and_b32 {sr(sT0)}, {sr(sT0)}, 0xff")
        e(f"    s_add_u32 {sr(sTAB)}, {sr(sTAB)}, {sr(sT0)}")
    if table:
        e("    s_waitcnt lgkmcnt(0)")
        e(f"    s_lshl2_add_u32 {sr(sT1)}, s2, 256")
        e(f"    s_load_dword {sr(sTAB)}, {sr(sMK, 2)}, {sr(sT1)}")
        e(f"    s_load_dwordx8 s[80:87], {sr(sMK, 2)}, 2048")
        e("    s_waitcnt lgkmcnt(0)")
    e(f"    s_andn2_b32 {sr(sT0)}, {sr(sTAB)}, 7")
    e(f"    s_and_b32 {sr(sT1)}, s2, 8")
    e(f"    s_lshl1_add_u32 {sr(sB0)}, {sr(sT0)}, {sr(sT1)}")
    e(f"    s_lshl_b32 {sr(sB0)}, {sr(sB0)}, 12")
    e(f"    s_and_b32 {sr(sTAB)}, {sr(sTAB)}, 7")
    e(f"    s_lshl_b32 {sr(sTAB)}, {sr(sTAB)}, 12")
    e(f"    s_lshl3_add_u32 {sr(sREG)}, {sr(sHEAD)}, {sr(sBL)}")
    e(f"    s_lshl_b32 {sr(sREG)}, {sr(sREG)}, 21")
    e(f"    s_mov_b32 {sr(sS + 2)}, {2 * MiB:#x}")
    e(f"    s_mov_b32 {sr(sS + 3)}, 0x20000")
    e(f"    v_and_b32 {vr(vT)}, 3, {vr(vLane)}")
    e(f"    v_bfe_u32 {vr(vT + 1)}, {vr(vLane)}, 2, 2")
    e(f"    v_lshrrev_b32 {vr(vT + 2)}, 4, {vr(vLane)}")
    e(f"    v_lshlrev_b32 {vr(vOff)}, 4, {vr(vT)}")
    e(f"    v_lshl_add_u32 {vr(vOff)}, {vr(vT + 1)}, 8, {vr(vOff)}")
    e(f"    v_lshl_add_u32 {vr(vOff)}, {vr(vT + 2)}, 6, {vr(vOff)}")
    if early:
        for u in range(1, 8):
            tab(u)
        e(f"    v_and_b32 {vr(vT)}, 1, {vr(vLane)}")
        e(f"    v_lshlrev_b32 {vr(vT)}, 8, {vr(vT)}")
        e(f"    v_lshl_add_u32 {vr(vT)}, {vr(vT + 1)}, 4, {vr(vT)}")
        e(f"    v_lshl_add_u32 {vr(vT)}, {vr(vT + 2)}, 6, {vr(vT)}")
        e(f"    v_lshlrev_b32 {vr(vLin)}, 4, {vr(vLane)}")
        e(f"    s_lshl_b32 {sr(sT0)}, {sr(sHEAD)}, 9")
        e(f"    s_lshl_b32 {sr(sT1)}, {sr(sHEAD)}, 8")
        e(f"    s_movk_i32 {sr(sPR + 2)}, 512")
        e(f"    s_mov_b32 {sr(sPR + 3)}, 0x20000")
        e(f"    s_movk_i32 {sr(sY + 2)}, 256")
        e(f"    s_mov_b32 {sr(sY + 3)}, 0x20000")
        setoff(0, sB0)
        e("    s_waitcnt lgkmcnt(0)")
        e(f"    s_add_u32 {sr(sS)}, {sr(sKp)}, {sr(sREG)}")
        e(f"    s_addc_u32 {sr(sS + 1)}, {sr(sKp + 1)}, 0")
        mark("arg")
        for k in range(first):
            if k:
                setoff(k, sB0)
            load(k)
        e(f"    s_add_u32 {sr(sPR)}, {sr(sQ)}, {sr(sT0)}")
        e(f"    s_addc_u32 {sr(sPR + 1)}, {sr(sQ + 1)}, 0")
        e(f"    buffer_load_dwordx4 {vr(vQ, 4)}, {vr(vT)}, {sr(sPR, 4)}, 0 offen")
        e(f"    s_add_u32 {sr(sY)}, {sr(sKT)}, {sr(sT1)}")
        e(f"    s_addc_u32 {sr(sY + 1)}, {sr(sKT + 1)}, 0")
        e(f"    buffer_load_dwordx4 {vr(vKT, 4)}, {vr(vOff)}, {sr(sY, 4)}, 0 offen")
        e(f"    s_add_u32 {sr(sY)}, {sr(sVT)}, {sr(sT1)}")
        e(f"    s_addc_u32 {sr(sY + 1)}, {sr(sVT + 1)}, 0")
        e(f"    buffer_load_dwordx4 {vr(vVT, 4)}, {vr(vLin)}, {sr(sY, 4)}, 0 offen")
        e(f"    s_mov_b64 {sr(sPR, 2)}, {sr(sMK, 2)}")
        e(f"    s_mov_b32 {sr(sPR + 2)}, 2")
        e(f"    buffer_load_ushort {vr(vXT)}, off, {sr(sPR, 4)}, 0")
        for k in range(first, D):
            if k:
                setoff(k, sB0)
            load(k)
    else:
        setoff(0, sB0)
        e("    s_waitcnt lgkmcnt(0)")
        e(f"    s_add_u32 {sr(sS)}, {sr(sKp)}, {sr(sREG)}")
        e(f"    s_addc_u32 {sr(sS + 1)}, {sr(sKp + 1)}, 0")
        load(0)
        e(f"    v_and_b32 {vr(vT)}, 1, {vr(vLane)}")
        e(f"    v_lshlrev_b32 {vr(vT)}, 8, {vr(vT)}")
        load(1)
        e(f"    v_lshl_add_u32 {vr(vT)}, {vr(vT + 1)}, 4, {vr(vT)}")
        e(f"    v_lshl_add_u32 {vr(vT)}, {vr(vT + 2)}, 6, {vr(vT)}")
        e(f"    s_lshl_b32 {sr(sT1)}, {sr(sHEAD)}, 9")
        load(2)
        e(f"    s_add_u32 {sr(sPR)}, {sr(sQ)}, {sr(sT1)}")
        e(f"    s_addc_u32 {sr(sPR + 1)}, {sr(sQ + 1)}, 0")
        e(f"    s_movk_i32 {sr(sPR + 2)}, 512")
        load(3)
        e(f"    s_mov_b32 {sr(sPR + 3)}, 0x20000")
        e(f"    s_lshl_b32 {sr(sT1)}, {sr(sHEAD)}, 8")
        e(f"    s_movk_i32 {sr(sY + 2)}, 256")
        e(f"    buffer_load_dwordx4 {vr(vQ, 4)}, {vr(vT)}, {sr(sPR, 4)}, 0 offen")
        e(f"    s_add_u32 {sr(sY)}, {sr(sKT)}, {sr(sT1)}")
        e(f"    s_addc_u32 {sr(sY + 1)}, {sr(sKT + 1)}, 0")
        e(f"    s_mov_b32 {sr(sY + 3)}, 0x20000")
        e(f"    buffer_load_dwordx4 {vr(vKT, 4)}, {vr(vOff)}, {sr(sY, 4)}, 0 offen")
        e(f"    v_lshlrev_b32 {vr(vLin)}, 4, {vr(vLane)}")
        e(f"    s_add_u32 {sr(sY)}, {sr(sVT)}, {sr(sT1)}")
        e(f"    s_addc_u32 {sr(sY + 1)}, {sr(sVT + 1)}, 0")
        e(f"    buffer_load_dwordx4 {vr(vVT, 4)}, {vr(vLin)}, {sr(sY, 4)}, 0 offen")
        e(f"    s_mov_b64 {sr(sPR, 2)}, {sr(sMK, 2)}")
        e(f"    s_mov_b32 {sr(sPR + 2)}, 2")
        e(f"    buffer_load_ushort {vr(vXT)}, off, {sr(sPR, 4)}, 0")
        tab(1)
        for k in range(4, D):
            setoff(k, sB0)
            load(k)
            if k % 4 == 1 and k // 4 < 7:
                tab(k // 4 + 1)
        for u in range((D - 2) // 4 + 2, 8):
            tab(u)
    e("    ; workspace per head: 16 records, then the arrival counter; the own record is filled with an")
    e(f"    s_and_b32 {sr(sCH)}, s2, 15")
    e(f"    s_mul_i32 {sr(sREC)}, {sr(sHEAD)}, {HW}")
    e(f"    s_add_u32 {sr(sW)}, {sr(sWS)}, {sr(sREC)}")
    e(f"    s_addc_u32 {sr(sW + 1)}, {sr(sWS + 1)}, 0")
    e(f"    s_mov_b32 {sr(sW + 2)}, {HW}")
    e(f"    s_mov_b32 {sr(sW + 3)}, 0x20000")
    e(f"    s_mul_i32 {sr(sREC)}, {sr(sCH)}, {SLOT}")
    for j in range(4):
        e(f"    v_mov_b32 {vr(vAcc + j)}, -1")
    e(f"    buffer_store_dwordx4 {vr(vAcc, 4)}, {vr(vLin)}, {sr(sW, 4)}, {sr(sREC)} offen sc1")
    e("    s_mov_b64 exec, 0xff")
    e(f"    buffer_store_dwordx4 {vr(vAcc, 4)}, {vr(vLin)}, {sr(sW, 4)}, {sr(sREC)} offen offset:1024 sc1")
    e("    s_mov_b64 exec, -1")
    e(f"    s_add_u32 {sr(sVB)}, {sr(sVp)}, {sr(sREG)}")
    e(f"    s_addc_u32 {sr(sVB + 1)}, {sr(sVp + 1)}, 0")
    if mini:
        e("    s_cmp_ge_u32 s2, 8")
        e("    s_cbranch_scc1 L_nomini")
        e(f"    s_lshl_b32 {sr(sT1)}, s2, 8")
        e(f"    s_add_u32 {sr(sT1)}, {sr(sT1)}, 0x100000")
        e(f"    v_mov_b32 {vr(vT + 1)}, {sr(sT1)}")
        e(f"    v_mov_b32 {vr(vT + 2)}, {sr(sTS)}")
        e(f"    v_mov_b32 {vr(vT + 3)}, {sr(sTS + 1)}")
        e("    s_mov_b64 exec, 1")
        e(f"    global_store_dwordx2 {vr(vT + 1)}, {vr(vT + 2, 2)}, {sr(sWS, 2)} sc1")
        e("    s_mov_b64 exec, -1")
        e("L_nomini:")
    e(f"    s_mov_b32 {sr(sBASE)}, {sr(sB0)}")
    e(f"    s_mov_b32 {sr(sC)}, {f32(cexp)}")
    e(f"    s_mov_b32 {sr(sIT)}, 0")
    e("    ; progress words: 16-bit slots at d_debug+128, slot w>>3 = own iteration count, slot 32+(w&7) = bias")
    e(f"    s_mov_b64 {sr(sY, 2)}, {sr(sDBG, 2)}")
    e(f"    s_mov_b32 {sr(sY + 2)}, 4")
    e(f"    s_add_u32 {sr(sPR)}, {sr(sDBG)}, 128")
    e(f"    s_addc_u32 {sr(sPR + 1)}, {sr(sDBG + 1)}, 0")
    e(f"    s_movk_i32 {sr(sPR + 2)}, 80")
    e(f"    s_lshr_b32 {sr(sT0)}, s2, 3")
    e(f"    s_lshl1_add_u32 {sr(sPW)}, {sr(sT0)}, {sr(sPR)}")
    e(f"    s_addc_u32 {sr(sPW + 1)}, {sr(sPR + 1)}, 0")
    e(f"    s_add_u32 {sr(sBL)}, {sr(sBL)}, 32")
    e(f"    s_lshl1_add_u32 {sr(sPB)}, {sr(sBL)}, {sr(sPR)}")
    e(f"    s_addc_u32 {sr(sPB + 1)}, {sr(sPR + 1)}, 0")
    e(f"    s_and_b32 {sr(sT1)}, {sr(sDBG)}, 127")
    e(f"    s_cselect_b32 {sr(sPW + 2)}, 0, 2")
    e(f"    s_cselect_b32 {sr(sPB + 2)}, 0, 2")
    e(f"    s_mov_b32 {sr(sPW + 3)}, 0x20000")
    e(f"    s_mov_b32 {sr(sPB + 3)}, 0x20000")
    e("    ; round in which this workgroup takes an arrival number for its group of 32, and that round's counter")
    e(f"    s_mul_i32 {sr(sTK)}, {sr(sT0)}, {pow(rot, -1, 32)}")
    e(f"    s_and_b32 {sr(sTK)}, {sr(sTK)}, 31")
    e(f"    s_mul_i32 {sr(sTB)}, {sr(sTK)}, {HW}")
    e(f"    s_add_u32 {sr(sTB)}, {sr(sTB)}, {16 * SLOT + 16 * HW}")
    e(f"    s_mul_i32 {sr(sTK)}, {sr(sTK)}, {T}")
    e(f"    s_add_u32 {sr(sTK)}, {sr(sTK)}, {t0m}")
    e(f"    s_cmp_ge_u32 {sr(sTK)}, {2 * NIT - 5}")
    e(f"    s_cselect_b32 {sr(sTK)}, 0x7fff, {sr(sTK)}")
    e(f"    v_lshlrev_b32 {vr(vPo)}, 1, {vr(vLane)}")
    e(f"    v_mov_b32 {vr(vPg)}, 0")
    e(f"    v_mov_b32 {vr(vPs)}, 0")
    e(f"    v_mov_b32 {vr(vLds)}, {vr(vLin)}")
    e("    ; byte selectors of the probability operand: row lane&15 = (head, element)")
    e(f"    v_bfe_u32 {vr(vT)}, {vr(vLane)}, 3, 1")
    e(f"    v_mul_u32_u24 {vr(vT)}, 0x0202, {vr(vT)}")
    e(f"    v_add_u32 {vr(vT)}, 0x0100, {vr(vT)}")
    e(f"    v_xor_b32 {vr(vT)}, 0x0c0c, {vr(vT)}")
    e(f"    v_and_b32 {vr(vT + 1)}, 1, {vr(vLane)}")
    e(f"    v_lshlrev_b32 {vr(vT + 1)}, 4, {vr(vT + 1)}")
    e(f"    v_lshlrev_b32 {vr(vT)}, {vr(vT + 1)}, {vr(vT)}")
    e(f"    v_xor_b32 {vr(vT)}, 0x0c0c0c0c, {vr(vT)}")
    e(f"    v_bfe_u32 {vr(vT + 1)}, {vr(vLane)}, 1, 2")
    e(f"    v_mov_b32 {vr(vT + 2)}, 0x0c0c0c0c")
    for t in range(4):
        e(f"    v_cmp_eq_u32 vcc, {t}, {vr(vT + 1)}")
        e("    s_nop 1")
        e(f"    v_cndmask_b32 {vr(vSel + t)}, {vr(vT + 2)}, {vr(vT)}, vcc")
    e("    ; q split into two column-masked operands (column bit 1 selects the load of a pair)")
    e(f"    v_and_b32 {vr(vT)}, 2, {vr(vLane)}")
    e(f"    v_cmp_eq_u32 vcc, 0, {vr(vT)}")
    e("    s_nop 0")
    mark("setup")
    e(f"    s_waitcnt vmcnt({D - max(first, 1)})")
    mark("data")
    for j in range(4):
        e(f"    v_cndmask_b32 {vr(vQ + 4 + j)}, {vr(vQ + j)}, 0, vcc")
    for j in range(4):
        e(f"    v_cndmask_b32 {vr(vQ + j)}, 0, {vr(vQ + j)}, vcc")
    e("    ; tree token score with its mask bias, valid in lanes 0 and 1 of chunk 0")
    e(f"    v_lshlrev_b32 {vr(vXT)}, 16, {vr(vXT)}")
    e(f"    v_sub_f32 {vr(vXT)}, 1.0, {vr(vXT)}")
    e(f"    v_mfma_f32_16x16x32_bf16 {vr(vD, 4)}, {vr(vKT, 4)}, {vr(vQ, 4)}, 0")
    e(f"    v_mul_f32 {vr(vXT)}, {f32(-1e9 / scale)}, {vr(vXT)}")
    e(f"    s_cmp_eq_u32 {sr(sCH)}, 0")
    e(f"    s_cselect_b64 vcc, 3, 0")
    e(f"    v_mov_b32 {vr(vMax)}, {NEG_INF}")
    e("    s_nop 4")
    e(f"    v_add_f32 {vr(vXT)}, {vr(vXT)}, {vr(vD)}")
    e(f"    v_mov_b32_dpp {vr(vT)}, {vr(vD + 1)} row_ror:12 {ALL}")
    e(f"    v_mov_b32_dpp {vr(vT + 1)}, {vr(vD + 2)} row_ror:8 {ALL}")
    e(f"    v_mov_b32_dpp {vr(vT + 2)}, {vr(vD + 3)} row_ror:4 {ALL}")
    e(f"    v_add_f32 {vr(vXT)}, {vr(vXT)}, {vr(vT)}")
    e(f"    v_add_f32 {vr(vT + 1)}, {vr(vT + 1)}, {vr(vT + 2)}")
    e(f"    v_add_f32 {vr(vXT)}, {vr(vXT)}, {vr(vT + 1)}")
    e(f"    v_cndmask_b32 {vr(vXT)}, {vr(vMax)}, {vr(vXT)}, vcc")
    e(f"    v_mov_b32 {vr(vMax)}, {vr(vXT)}")
    if trace:
        e("    s_mov_b32 m0, 0")
    if stamps:
        e(f"    s_mov_b32 {sr(sACC)}, 0")

    def dppctl(t, j):
        n = (4 * (t - j)) % 16
        c = "quad_perm:[0,1,2,3]" if n == 0 else f"row_ror:{n}"
        return f"{c} row_mask:0xf bank_mask:{1 << t:#x}"

    def red1(p):
        t = p % 4
        e(f"    v_mov_b32_dpp {vr(vXa)}, {vr(vD + 4 * t)} {dppctl(t, 0)}")
        e(f"    v_mov_b32_dpp {vr(vXb)}, {vr(vD + 4 * t + 1)} {dppctl(t, 1)}")

    def red2(p):
        t = p % 4
        e(f"    v_add_f32_dpp {vr(vXa)}, {vr(vD + 4 * t + 2)}, {vr(vXa)} {dppctl(t, 2)}")
        e(f"    v_add_f32_dpp {vr(vXb)}, {vr(vD + 4 * t + 3)}, {vr(vXb)} {dppctl(t, 3)}")
        if t == 3:
            e(f"    v_add_f32 {vr(vX + p // 4)}, {vr(vXa)}, {vr(vXb)}")

    def control(ph, m, k):
        if k == ps:
            e(f"    v_add_u32 {vr(vPg)}, 1, {vr(vPg)}")
            e(f"    buffer_store_short {vr(vPg)}, {vr(vPo)}, {sr(sPW, 4)}, 0 offen")
        if k == use - 3:
            e(f"    v_cmp_lt_u32 vcc, {sr(sIT)}, {vr(vPs)}")
            e(f"    s_bcnt1_i32_b32 {sr(sAH)}, vcc_lo")
            e(f"    v_cmp_gt_u32 vcc, {sr(sIT)}, {vr(vPs)}")
            e(f"    s_bcnt1_i32_b32 {sr(sBH)}, vcc_lo")
            e(f"    v_readlane_b32 {sr(sBI)}, {vr(vPs)}, {sr(sBL)}")
        if k == use - 2:
            e(f"    s_mul_i32 {sr(sT0)}, {sr(sIT)}, 5")
            e(f"    s_add_u32 {sr(sT0)}, {sr(sT0)}, {sr(sHEAD)}")
            e(f"    s_and_b32 {sr(sT0)}, {sr(sT0)}, 15")
            e(f"    s_sext_i32_i16 {sr(sT1)}, {sr(sBI)}")
            e(f"    s_cmp_lt_i32 {sr(sT0)}, {sr(sT1)}")
            e(f"    s_cselect_b32 {sr(sNM)}, 2, 1")
            e(f"    s_add_i32 {sr(sT1)}, {sr(sT1)}, {sr(sT0)}")
        if k == use - 1:
            e(f"    s_cmp_lt_i32 {sr(sT1)}, 0")
            e(f"    s_cselect_b32 {sr(sNM)}, 0, {sr(sNM)}")
            e(f"    s_cmp_gt_u32 {sr(sBH)}, {lo}")
            e(f"    s_cselect_b32 {sr(sNM)}, 0, {sr(sNM)}")
            e(f"    s_cmp_gt_u32 {sr(sAH)}, {hi}")
            e(f"    s_cselect_b32 {sr(sNM)}, 2, {sr(sNM)}")
        if k == use:
            if stamps:
                e(f"    s_add_u32 {sr(sACC)}, {sr(sACC)}, {sr(sNM)}")
            e(f"    s_cmp_lg_u32 {sr(sNM)}, {m}")
            e(f"    s_cbranch_scc1 L_{ph}_pick")
            e(f"L_{ph}{m}_u:")
        if k == rd:
            e(f"    buffer_load_ushort {vr(vPs)}, {vr(vPo)}, {sr(sPR, 4)}, 0 offen sc1")
        if k == 25:
            e(f"    s_sub_u32 {sr(sT0)}, {sr(sIT)}, {sr(sTK)}")
            e(f"    s_cmp_lt_u32 {sr(sT0)}, {4 if esc else 3}")
            e(f"    s_cbranch_scc1 L_{ph}{m}_round")
            e(f"L_{ph}{m}_t:")
        if amp.startswith("it") and k == 26:
            e(f"    s_cmp_lg_u32 {sr(sIT)}, {int(amp[2:])}")
            e(f"    s_cbranch_scc1 L_{ph}{m}_na")
            mark(amp)
            e(f"L_{ph}{m}_na:")
        if 0 <= ampfrom < 100 and k == 26:
            e(f"    s_cmp_lg_u32 {sr(sIT)}, {ampfrom}")
            e(f"    s_cbranch_scc1 L_{ph}{m}_nb")
            e(f"    s_memrealtime {sr(sTS + 4, 2)}")
            e(f"L_{ph}{m}_nb:")
        if trace and k == 26:
            e(f"    s_memrealtime {sr(sTR, 2)}")
        if trace and k == 24:
            e("    s_waitcnt lgkmcnt(0)")
            e(f"    v_writelane_b32 {vr(vTr)}, {sr(sTR)}, m0")
            e("    s_add_u32 m0, m0, 1")

    order = (1, 0, 2)
    for m in order:
        e(f".p2align {al if m == 1 else 6}")
        e(f"L_k{m}:")
        for k in range(NR):
            p, g = k // 2, k % 2
            d = vr(vD + 4 * (p % 4), 4)
            e(f"    v_mfma_f32_16x16x32_bf16 {d}, {rg(k)}, {vr(vQ + 4 * g, 4)}, {d if g else 0}")
            if k == NR - D:
                e(f"    s_add_u32 {sr(sBASE)}, {sr(sBASE)}, 0x10000")
                e(f"    s_cmp_lg_u32 {sr(sIT)}, {NIT - 1}")
                e(f"    s_cbranch_scc1 L_k{m}_same")
                e(f"    s_mov_b64 {sr(sS, 2)}, {sr(sVB, 2)}")
                e(f"    v_mov_b32 {vr(vOff)}, {vr(vLin)}")
                e(f"L_k{m}_same:")
            setoff((k + D) % NR, sBASE)
            e(f"    s_waitcnt vmcnt({RK[m][k & 1] - 1})")
            load((k + D) % NR)
            if k >= 3 and k % 2 == 1:
                red1((k - 3) // 2)
            elif k >= 4:
                red2((k - 4) // 2)
            else:
                e("    s_nop 1")
            control("k", m, k)
        e(f"    s_add_u32 {sr(sIT)}, {sr(sIT)}, 1")
        e("    s_nop 0")
        red2(NR // 2 - 2)
        e("    s_nop 1")
        red1(NR // 2 - 1)
        e(f"    s_cmp_lg_u32 {sr(sIT)}, {NIT}")
        red2(NR // 2 - 1)
        e(f"    v_max3_f32 {vr(vMax)}, {vr(vMax)}, {vr(vX)}, {vr(vX + 1)}")
        e(f"    v_max3_f32 {vr(vMax)}, {vr(vMax)}, {vr(vX + 2)}, {vr(vX + 3)}")
        e(f"    ds_write_b128 {vr(vLds)}, {vr(vX, 4)}")
        e(f"    v_add_u32 {vr(vLds)}, {slot}, {vr(vLds)}")
        e(f"    s_cbranch_scc1 L_k{m}")
        if m != order[-1]:
            e("    s_branch L_mid")

    def expand(k, lane):
        e(f"    v_mov_b32_dpp {vr(vBc)}, {vr(vP)} row_newbcast:{lane} {ALL}")
        return [f"    v_perm_b32 {vr(vB + 4 * (k & 1) + t)}, {vr(vBc)}, {vr(vBc)}, {vr(vSel + t)}" for t in range(4)]

    e("L_mid:")
    e("    ; chunk maximum per head (lane parity), tree token contribution, first probability operands")
    e(f"    v_mov_b32 {vr(vLds)}, {vr(vLin)}")
    e(f"    ds_read_b128 {vr(vX, 4)}, {vr(vLin)}")
    e(f"    buffer_load_dword {vr(vFl)}, off, {sr(sY, 4)}, 0 sc1")
    for c in ("quad_perm:[2,3,0,1]", "row_ror:4", "row_ror:8"):
        e(f"    v_max_f32_dpp {vr(vMax)}, {vr(vMax)}, {vr(vMax)} {c} {ALL}")
        if c != "row_ror:8":
            e("    s_nop 1")
    for sw in ("v_permlane16_swap_b32", "v_permlane32_swap_b32"):
        e(f"    v_mov_b32 {vr(vT)}, {vr(vMax)}")
        e("    s_nop 1")
        e(f"    {sw} {vr(vMax)}, {vr(vT)}")
        e(f"    v_max_f32 {vr(vMax)}, {vr(vMax)}, {vr(vT)}")
    e(f"    v_mul_f32 {vr(vMc)}, {sr(sC)}, {vr(vMax)}")
    e(f"    v_fma_f32 {vr(vXT)}, {vr(vXT)}, {sr(sC)}, -{vr(vMc)}")
    e(f"    v_exp_f32 {vr(vL)}, {vr(vXT)}")
    e("    s_waitcnt lgkmcnt(0)")
    e(f"    v_fma_f32 {vr(vE)}, {vr(vX)}, {sr(sC)}, -{vr(vMc)}")
    e(f"    v_exp_f32 {vr(vE)}, {vr(vE)}")
    e(f"    v_mov_b32_dpp {vr(vT + 1)}, {vr(vL)} quad_perm:[1,0,3,2] {ALL}")
    e(f"    v_cvt_pk_bf16_f32 {vr(vP)}, {vr(vL)}, {vr(vT + 1)}")
    e(f"    v_mov_b32_dpp {vr(vT)}, {vr(vE)} quad_perm:[1,0,3,2] {ALL}")
    e(f"    v_add_f32 {vr(vL)}, {vr(vL)}, {vr(vE)}")
    for x in expand(1, 0):
        e(x)
    e(f"    v_cvt_pk_bf16_f32 {vr(vP)}, {vr(vE)}, {vr(vT)}")
    e("    s_nop 0")
    e(f"    v_mfma_f32_16x16x32_bf16 {vr(vAcc, 4)}, {vr(vB + 4, 4)}, {vr(vVT, 4)}, 0")
    for x in expand(0, 0):
        e(x)
    for x in expand(1, 2):
        e(x)

    def pstage(k):
        s = k % 8
        if s == 0:
            e(f"    v_fma_f32 {vr(vE)}, {vr(vX + (k // 8 + 1) % 4)}, {sr(sC)}, -{vr(vMc)}")
        elif s == 1:
            e(f"    v_exp_f32 {vr(vE)}, {vr(vE)}")
        elif s == 2:
            e(f"    v_add_f32 {vr(vL)}, {vr(vL)}, {vr(vE)}")
        elif s == 3:
            e(f"    v_mov_b32_dpp {vr(vT)}, {vr(vE)} quad_perm:[1,0,3,2] {ALL}")
        elif s == 5:
            e(f"    v_cvt_pk_bf16_f32 {vr(vP)}, {vr(vE)}, {vr(vT)}")

    def pv(k):
        e(f"    v_mfma_f32_16x16x32_bf16 {vr(vAcc, 4)}, {vr(vB + 4 * (k & 1), 4)}, {rg(k)}, {vr(vAcc, 4)}")

    e("    ; ---------------- phase V: one MFMA per load, A = probabilities on a diagonal, B = four value rows")
    for m in order:
        e(f".p2align {al if m == 1 else 6}")
        e(f"L_v{m}:")
        for k in range(NR):
            pv(k)
            if k == NR - D:
                e(f"    s_add_u32 {sr(sBASE)}, {sr(sBASE)}, 0x10000")
            setoff((k + D) % NR, sBASE)
            e(f"    s_waitcnt vmcnt({RV[m][k & 1] - 1})")
            load((k + D) % NR)
            perms = expand(k + 2, 2 * ((k + 2) % 8))
            if k == 24:
                e("    s_waitcnt lgkmcnt(0)")
            if k == 17:
                e(f"    ds_read_b128 {vr(vX, 4)}, {vr(vLds)} offset:{slot}")
            pstage(k)
            for x in perms:
                e(x)
            control("v", m, k)
            if k == s0 - 1:
                e(f"    s_cmp_eq_u32 {sr(sIT)}, {2 * NIT - 2}")
                e("    s_cbranch_scc1 L_last")
        e(f"    s_add_u32 {sr(sIT)}, {sr(sIT)}, 1")
        e(f"    v_add_u32 {vr(vLds)}, {slot}, {vr(vLds)}")
        e(f"    s_branch L_v{m}")

    vW, vS2, vGa, vOa, vG = vXa, vXb, vXT, vFl, vX
    e(".p2align 6")
    e("L_last:")
    for j in range(s0 + D - NR, s0):
        setoff(j, sBASE)
        load(j)
    for k in range(s0, NR):
        e(f"    s_waitcnt vmcnt({NR - 1})")
        pv(k)
        setoff(k, sBASE)
        load(k)
        perms = expand(k + 2, 2 * ((k + 2) % 8))
        pstage(k)
        for x in perms:
            e(x)
    e(f"    v_readfirstlane_b32 {sr(sT0)}, {vr(vFl)}")
    e(f"    s_cmp_eq_u32 {sr(sT0)}, 0")
    e("    s_cbranch_scc1 L_flag")
    e("L_ready:")
    lsum = []
    for c in ("quad_perm:[2,3,0,1]", "row_ror:4", "row_ror:8"):
        lsum.append([f"    v_add_f32_dpp {vr(vL)}, {vr(vL)}, {vr(vL)} {c} {ALL}"])
    for sw in ("v_permlane16_swap_b32", "v_permlane32_swap_b32"):
        lsum.append([f"    v_mov_b32 {vr(vT + 1)}, {vr(vL)}"])
        lsum.append([f"    {sw} {vr(vL)}, {vr(vT + 1)}", f"    v_add_f32 {vr(vL)}, {vr(vL)}, {vr(vT + 1)}"])
    lsum.append([f"    v_min_u32 {vr(vMc)}, -2, {vr(vMc)}", f"    v_min_u32 {vr(vL)}, -2, {vr(vL)}"])
    setup = [
        [f"    v_lshrrev_b32 {vr(vT + 2)}, 5, {vr(vLane)}", f"    v_and_b32 {vr(vT + 3)}, 15, {vr(vLane)}"],
        [f"    v_mul_u32_u24 {vr(vGa)}, {SLOT}, {vr(vT + 3)}", f"    v_lshl_add_u32 {vr(vGa)}, {vr(vT + 2)}, 3, {vr(vGa)}"],
        [f"    v_lshlrev_b32 {vr(vMax)}, 8, {vr(vT + 2)}", f"    v_lshl_add_u32 {vr(vMax)}, {vr(vT + 3)}, 4, {vr(vMax)}"],
        [f"    v_bfe_u32 {vr(vT + 3)}, {vr(vLane)}, 4, 1", f"    v_lshl_add_u32 {vr(vOa)}, {vr(vT + 3)}, 3, {vr(vMax)}"],
        [f"    s_lshl_b32 {sr(sT0)}, {sr(sHEAD)}, 9", f"    s_add_u32 {sr(sS)}, {sr(sOUT)}, {sr(sT0)}",
         f"    s_addc_u32 {sr(sS + 1)}, {sr(sOUT + 1)}, 0", f"    s_movk_i32 {sr(sS + 2)}, 512"],
        [f"    v_lshlrev_b32 {vr(vT + 2)}, 3, {vr(vLane)}"],
    ]
    late = []
    if gm & 2:
        late = [f"    v_lshrrev_b32 {vr(vT)}, 5, {vr(vLane)}", f"    v_and_b32 {vr(vT + 1)}, 15, {vr(vLane)}",
                f"    v_lshlrev_b32 {vr(vOa)}, 8, {vr(vT)}", f"    v_lshl_add_u32 {vr(vOa)}, {vr(vT + 1)}, 4, {vr(vOa)}",
                f"    v_bfe_u32 {vr(vT)}, {vr(vLane)}, 4, 1", f"    v_lshl_add_u32 {vr(vOa)}, {vr(vT)}, 3, {vr(vOa)}"] + setup[4]
        del setup[2:5]
    for k in range(NR):
        e(f"    s_waitcnt vmcnt({NR - 1 - k})")
        pv(k)
        if k == ea:
            e(f"    s_mov_b32 {sr(sAT)}, 1")
            e(f"    s_atomic_add {sr(sAT)}, {sr(sW, 2)}, {16 * SLOT} glc")
        perms = expand(k + 2, 2 * ((k + 2) % 8)) if k + 2 < NR else []
        if k < 24:
            pstage(k)
        if setup:
            for x in setup.pop(0):
                e(x)
        if k >= 20 and lsum:
            for x in lsum.pop(0):
                e(x)
        for x in perms:
            e(x)
    assert not lsum and not setup
    if stamps:
        e(f"    s_memrealtime {sr(sTS + 2, 2)}")
    mark("end")
    if ampfrom == 100:
        e(f"    s_memrealtime {sr(sTS + 4, 2)}")
    e("    s_waitcnt lgkmcnt(0)")
    e(f"    s_cmp_eq_u32 {sr(sAT)}, 15")
    e("    s_nop 5")
    for j in range(4):
        e(f"    v_min_u32 {vr(vAcc + j)}, -2, {vr(vAcc + j)}")

    def put(pol):
        e(f"    buffer_store_dwordx4 {vr(vAcc, 4)}, {vr(vLin)}, {sr(sW, 4)}, {sr(sREC)} offen{pol}")
        e("    s_mov_b64 exec, 0xffff")
        e(f"    buffer_store_dwordx2 {vr(vML, 2)}, {vr(vT + 2)}, {sr(sW, 4)}, {sr(sREC)} offen offset:1024{pol}")

    def leave():
        if stamps or amp and ampwg != -3:
            e("    s_mov_b64 exec, -1")
            e("    s_branch L_fin")
        else:
            e("    s_endpgm")

    if near:
        e("    s_cbranch_scc1 L_merge")
        put(" sc1")
        leave()
        e("L_merge:")
    else:
        e("    s_cbranch_scc0 L_put")
    e("    ; last arrival of the head: its own record is read back by this wave only")
    put("")
    e("    s_mov_b64 exec, -1")

    def fetch(z):
        e(f"    buffer_load_dwordx2 {vr(vG + 2 * z, 2)}, {vr(vGa)}, {sr(sW, 4)}, 0 offen offset:1024 sc1")
        for i in range(16):
            if i % 3 == 0:
                e(f"    s_movk_i32 {sr(sO)}, {i * SLOT}")
            e(f"    buffer_load_dwordx4 {rg(16 * z + i)}, {vr(vLin)}, {sr(sW, 4)}, {sr(sO)} offen offset:{(i % 3) * SLOT} sc1")

    def merge(z, younger, again):
        g = vG + 2 * z
        e(f"    s_waitcnt vmcnt({16 + younger})")
        e(f"    v_max_f32_dpp {vr(vMax)}, {vr(g)}, {vr(g)} row_ror:1 {ALL}")
        e(f"    v_max_u32 {vr(vT)}, {vr(g)}, {vr(g + 1)}")
        e(f"    v_cmp_eq_u32 vcc, -1, {vr(vT)}")
        e(f"    v_max_f32_dpp {vr(vMax)}, {vr(vMax)}, {vr(vMax)} row_ror:2 {ALL}")
        e(f"    s_cbranch_vccnz {again}")
        e("    s_nop 0")
        e(f"    v_max_f32_dpp {vr(vMax)}, {vr(vMax)}, {vr(vMax)} row_ror:4 {ALL}")
        e("    s_nop 1")
        e(f"    v_max_f32_dpp {vr(vMax)}, {vr(vMax)}, {vr(vMax)} row_ror:8 {ALL}")
        e(f"    v_sub_f32 {vr(vW)}, {vr(g)}, {vr(vMax)}")
        e(f"    v_exp_f32 {vr(vW)}, {vr(vW)}")
        e("    s_nop 0")
        e(f"    v_mul_f32 {vr(vS2)}, {vr(g + 1)}, {vr(vW)}")
        extra = [f"    v_add_f32_dpp {vr(vS2)}, {vr(vS2)}, {vr(vS2)} row_ror:{n} {ALL}" for n in (1, 2, 4, 8)]
        extra.append(f"    v_rcp_f32 {vr(vS2)}, {vr(vS2)}")
        for i in range(16):
            if i % 2 == 0:
                e(f"    s_waitcnt vmcnt({14 - i + younger})")
            op = "v_mul_f32_dpp" if i == 0 else "v_fmac_f32_dpp"
            for j in range(4):
                e(f"    {op} {vr(vAcc + j)}, {vr(vW)}, {vr(ring + 64 * z + 4 * i + j)} row_newbcast:{i} {ALL}")
            if extra:
                e(extra.pop(0))
        e(f"    v_cmp_u_f32 vcc, {vr(vAcc)}, {vr(vAcc + 1)}")
        e(f"    v_cmp_u_f32 {sr(sAH, 2)}, {vr(vAcc + 2)}, {vr(vAcc + 3)}")
        for j in range(4):
            e(f"    v_mul_f32 {vr(vAcc + j)}, {vr(vAcc + j)}, {vr(vS2)}")
        e(f"    s_or_b64 vcc, vcc, {sr(sAH, 2)}")
        e(f"    v_cvt_pk_bf16_f32 {vr(vML)}, {vr(vAcc)}, {vr(vAcc + 1)}")
        e(f"    v_cvt_pk_bf16_f32 {vr(vML + 1)}, {vr(vAcc + 2)}, {vr(vAcc + 3)}")
        e(f"    s_cbranch_scc1 L_nan{z}")

    def nancheck(z, again):
        e(f"L_nan{z}:")
        r0 = ring + 64 * z
        e(f"    v_max_u32 {vr(vT)}, {vr(r0)}, {vr(r0 + 1)}")
        for r in range(2, 64, 2):
            e(f"    v_max3_u32 {vr(vT)}, {vr(vT)}, {vr(r0 + r)}, {vr(r0 + r + 1)}")
        e(f"    v_cmp_eq_u32 vcc, -1, {vr(vT)}")
        e(f"    s_cbranch_vccnz {again}")
        e("    s_branch L_out")

    if dbl:
        fetch(0)
        for _ in range(gap):
            e("    s_nop 15")
        if gm & 1:
            e("    s_waitcnt vmcnt(17)")
        for x in late:
            e(x)
        e("L_get1:")
        fetch(1)
        merge(0, 17, "L_get0")
    else:
        e("L_get0:")
        fetch(0)
        merge(0, 0, "L_get0")
    e("L_out:")
    e(f"    buffer_store_dwordx2 {vr(vML, 2)}, {vr(vOa)}, {sr(sS, 4)}, 0 offen")
    if amp:
        e("L_fin:")
        e("    s_waitcnt vmcnt(0)")
        mark("fin")
        if ampwg >= 0:
            e(f"    s_cmp_lg_u32 s2, {ampwg}")
            e("    s_cbranch_scc1 L_end")
        e("    s_waitcnt lgkmcnt(0)")
        e(f"    s_sub_u32 {sr(sT0)}, {sr(sTS + 2)}, {sr(sTS + 4 if ampfrom >= 0 else sTS)}")
        e(f"    s_sub_i32 {sr(sT0)}, {sr(sT0)}, {ampbase}")
        e(f"    s_max_i32 {sr(sT0)}, {sr(sT0)}, 0")
        e(f"    s_min_i32 {sr(sT0)}, {sr(sT0)}, 1000")
        if ampwg <= -2:
            e(f"    s_add_u32 {sr(sT0)}, {sr(sT0)}, 0x400000")
            e(f"    s_mov_b32 {sr(sT1)}, {sr(sT0)}")
            e(f"    s_atomic_add {sr(sT1)}, {sr(sDBG, 2)}, 64 glc")
            e("    s_waitcnt lgkmcnt(0)")
            e(f"    s_add_u32 {sr(sT0)}, {sr(sT0)}, {sr(sT1)}")
            e(f"    s_lshr_b32 {sr(sT1)}, {sr(sT0)}, 22")
            e(f"    s_cmp_lg_u32 {sr(sT1)}, {256 if ampwg == -2 else 16}")
            e("    s_cbranch_scc1 L_end")
            e(f"    s_and_b32 {sr(sT0)}, {sr(sT0)}, 0x3fffff")
        e(f"    s_mul_i32 {sr(sT0)}, {sr(sT0)}, {ampx}")
        if ampwg <= -2:
            e(f"    s_lshr_b32 {sr(sT0)}, {sr(sT0)}, {8 if ampwg == -2 else 4}")
        e(f"    s_add_u32 {sr(sTS)}, {sr(sTS)}, {sr(sT0)}")
        e(f"    s_add_u32 {sr(sTS)}, {sr(sTS)}, 10000")
        e("L_spin:")
        e(f"    s_memrealtime {sr(sTS + 2, 2)}")
        e("    s_waitcnt lgkmcnt(0)")
        e(f"    s_sub_u32 {sr(sT0)}, {sr(sTS + 2)}, {sr(sTS)}")
        e(f"    s_cmp_lt_i32 {sr(sT0)}, 0")
        e("    s_cbranch_scc1 L_spin")
    if stamps:
        e("L_fin:")
        e("    s_waitcnt vmcnt(0)")
        e(f"    s_memrealtime {sr(sTS + 4, 2)}")
        e(f"    s_lshl_b32 {sr(sT0)}, s2, 5")
        e(f"    s_add_u32 {sr(sW)}, {sr(sWS)}, 0x100000")
        e(f"    s_addc_u32 {sr(sW + 1)}, {sr(sWS + 1)}, 0")
        e(f"    s_mov_b32 {sr(sW + 2)}, 0x100000")
        e("    s_waitcnt lgkmcnt(0)")
        e(f"    s_mov_b32 {sr(sTS + 6)}, {sr(sACC)}")
        e(f"    s_mov_b32 {sr(sTS + 7)}, {sr(sACC)}")
        if trace:
            e(f"    s_lshl_b32 {sr(sT1)}, s2, 9")
            e(f"    s_add_u32 {sr(sT1)}, {sr(sT1)}, 0x40000")
            e(f"    v_lshlrev_b32 {vr(vT)}, 2, {vr(vLane)}")
            e(f"    buffer_store_dword {vr(vTr)}, {vr(vT)}, {sr(sW, 4)}, {sr(sT1)} offen")
        for k in range(8):
            e(f"    v_mov_b32 {vr(ring + k)}, {sr(sTS + k)}")
        e("    s_mov_b64 exec, 1")
        e(f"    buffer_store_dwordx4 {vr(ring, 4)}, off, {sr(sW, 4)}, {sr(sT0)}")
        e(f"    buffer_store_dwordx4 {vr(ring + 4, 4)}, off, {sr(sW, 4)}, {sr(sT0)} offset:16")
    e("L_end:")
    e("    s_endpgm")

    if dbl:
        e("L_get0:")
        fetch(0)
        merge(1, 17, "L_get1")
        e("    s_branch L_out")
    if not near:
        e("L_put:")
        put(" sc1")
        leave()
    e("    ; a NaN came out: fetch again if a record still held the fill pattern, otherwise it is the result")
    nancheck(0, "L_get0")
    if dbl:
        nancheck(1, "L_get1")
    e("    ; the counters were not yet reported as cleared when sampled: poll the flag")
    e("L_flag:")
    e(f"    buffer_load_dword {vr(vFl)}, off, {sr(sY, 4)}, 0 sc1")
    e("    s_waitcnt vmcnt(0)")
    e(f"    v_readfirstlane_b32 {sr(sT0)}, {vr(vFl)}")
    e(f"    s_cmp_eq_u32 {sr(sT0)}, 0")
    e("    s_cbranch_scc1 L_flag")
    e("    s_branch L_ready")
    e("    ; workgroup 256 clears the 16 + 32 counters and then raises the flag")
    e("L_extra:")
    e(f"    s_cmp_lg_u32 s2, {NWG}")
    e("    s_cbranch_scc1 L_end")
    e(f"    v_mul_u32_u24 {vr(vT)}, {HW}, {vr(vLane)}")
    e(f"    v_mov_b32 {vr(vT + 1)}, 0")
    e(f"    v_mov_b32 {vr(vT + 2)}, 1")
    e(f"    s_mov_b32 {sr(sW + 2)}, {48 * HW}")
    e(f"    s_mov_b32 {sr(sW + 3)}, 0x20000")
    e(f"    s_mov_b32 {sr(sY + 2)}, 4")
    e(f"    s_mov_b32 {sr(sY + 3)}, 0x20000")
    e(f"    s_mov_b32 {sr(sT0)}, {16 * SLOT}")
    e("    s_waitcnt lgkmcnt(0)")
    e(f"    s_mov_b64 {sr(sW, 2)}, {sr(sWS, 2)}")
    e(f"    s_mov_b64 {sr(sY, 2)}, {sr(sDBG, 2)}")
    e(f"    buffer_store_dword {vr(vT + 1)}, {vr(vT)}, {sr(sW, 4)}, {sr(sT0)} offen sc1")
    e("    s_mov_b64 exec, 1")
    e("    s_waitcnt vmcnt(0)")
    e(f"    buffer_store_dword {vr(vT + 2)}, off, {sr(sY, 4)}, 0 sc1")
    e("    s_endpgm")
    for ph in ("k", "v"):
        e(f"L_{ph}_pick:")
        e(f"    s_cmp_eq_u32 {sr(sNM)}, 1")
        e(f"    s_cbranch_scc1 L_{ph}1_u")
        e(f"    s_cmp_eq_u32 {sr(sNM)}, 0")
        e(f"    s_cbranch_scc1 L_{ph}0_u")
        e(f"    s_branch L_{ph}2_u")
    e("    ; three consecutive iterations of the round's workgroups: sample the flag, take the arrival number,")
    e("    ; publish the group's bias (share of iterations, in sixteenths, that use the wide or the narrow copy)")
    for ph in ("k", "v"):
        for m in order:
            e(f"L_{ph}{m}_round:")
            if esc:
                e(f"    s_cmp_eq_u32 {sr(sT0)}, 3")
                e(f"    s_cbranch_scc1 L_{ph}{m}_far")
            e(f"    s_cmp_eq_u32 {sr(sT0)}, 2")
            e(f"    s_cbranch_scc1 L_{ph}{m}_bias")
            e(f"    s_cmp_eq_u32 {sr(sT0)}, 1")
            e(f"    s_cbranch_scc1 L_{ph}{m}_take")
            e(f"    buffer_load_dword {vr(vFl)}, off, {sr(sY, 4)}, 0 sc1")
            e(f"    s_branch L_{ph}{m}_t")
            e(f"L_{ph}{m}_take:")
            e(f"    v_readfirstlane_b32 {sr(sT0)}, {vr(vFl)}")
            e(f"    s_cmp_eq_u32 {sr(sT0)}, 0")
            e(f"    s_cselect_b32 {sr(sTK)}, 0x7fff, {sr(sTK)}")
            e(f"    s_cbranch_scc1 L_{ph}{m}_t")
            e(f"    s_mov_b32 {sr(sAT)}, 1")
            e(f"    s_atomic_add {sr(sAT)}, {sr(sWS, 2)}, {sr(sTB)} glc")
            e(f"    s_branch L_{ph}{m}_t")
            e(f"L_{ph}{m}_bias:")
            e("    s_waitcnt lgkmcnt(0)")
            e(f"    s_lshl1_add_u32 {sr(sT0)}, {sr(sAT)}, -7")
            if esc:
                e(f"    s_mov_b32 {sr(sAT)}, 0")
                e(f"    s_atomic_add {sr(sAT)}, {sr(sWS, 2)}, {sr(sTB)} glc")
            e(f"    s_mul_i32 {sr(sT0)}, {sr(sT0)}, {kp}")
            if off:
                e(f"    s_add_i32 {sr(sT0)}, {sr(sT0)}, {off}")
            if dn != 1:
                e(f"    s_mul_i32 {sr(sT1)}, {sr(sT0)}, {dn}")
                if dh:
                    e(f"    s_ashr_i32 {sr(sT1)}, {sr(sT1)}, 1")
                e(f"    s_min_i32 {sr(sT0)}, {sr(sT0)}, {sr(sT1)}")
            if mem:
                e(f"    s_sext_i32_i16 {sr(sT1)}, {sr(sBI)}")
                e(f"    s_min_i32 {sr(sT1)}, {sr(sT1)}, 0")
                e(f"    s_max_i32 {sr(sT1)}, {sr(sT1)}, -16")
                e(f"    s_mul_i32 {sr(sT1)}, {sr(sT1)}, {mem}")
                e(f"    s_cmp_lt_i32 {sr(sT0)}, 0")
                e(f"    s_cselect_b32 {sr(sT1)}, {sr(sT1)}, 0")
                e(f"    s_add_i32 {sr(sT0)}, {sr(sT0)}, {sr(sT1)}")
            e(f"    s_add_i32 {sr(sT0)}, {sr(sT0)}, 2")
            e(f"    s_ashr_i32 {sr(sT0)}, {sr(sT0)}, 2")
            e(f"    v_mov_b32 {vr(vT + 2)}, {sr(sT0)}")
            e(f"    buffer_store_short {vr(vT + 2)}, {vr(vPo)}, {sr(sPB, 4)}, 0 offen")
            e(f"    s_branch L_{ph}{m}_t")
            if esc:
                e(f"L_{ph}{m}_far:")
                e("    s_waitcnt lgkmcnt(0)")
                e(f"    s_cmp_ge_u32 {sr(sAT)}, 8")
                e(f"    s_cbranch_scc1 L_{ph}{m}_t")
                e(f"    v_mov_b32 {vr(vT + 2)}, {-esc}")
                e(f"    buffer_store_short {vr(vT + 2)}, {vr(vPo)}, {sr(sPB, 4)}, 0 offen")
                e(f"    s_branch L_{ph}{m}_t")
    e("L_code_end:")
    e('.section .rodata,"a"')
    e(".p2align 6")
    e(f".amdhsa_kernel {NAME}_kernel")
    e(f"  .amdhsa_next_free_vgpr {nv}")
    e(f"  .amdhsa_next_free_sgpr {100 if stamps or mini or table or amp else 78}")
    e(f"  .amdhsa_accum_offset {(nv + 3) // 4 * 4}")
    e("  .amdhsa_group_segment_fixed_size 0")
    e("  .amdhsa_kernarg_size 72")
    e("  .amdhsa_user_sgpr_count 2")
    e("  .amdhsa_user_sgpr_kernarg_segment_ptr 1")
    e("  .amdhsa_system_sgpr_workgroup_id_x 1")
    e("  .amdhsa_float_denorm_mode_32 3")
    e(".end_amdhsa_kernel")
    return "\n".join(o) + "\n"


if __name__ == "__main__":
    for spec in sys.argv[1:]:
        name, _, kv = spec.partition(":")
        kw = {}
        for p in filter(None, kv.split(",")):
            k, v = p.split("=")
            kw[k] = v.replace("+", " ") if k in ("RK", "RV", "cs", "amp", "fl") else int(v)
        path = name if name.endswith(".s") else f"var/{name}.s"
        open(path, "w").write(gen(**kw))
```

```python
import struct
import sys

NAME = "standalone__tree_speculative_verify_tree_attention_over_candidate_token_tree__decode"
MiB = 1 << 20
NWG = 256
NR = 32
NIT = 32
SLOT = 1152
HW = 16 * SLOT + 2304
NEG_INF = "0xff800000"
ALL = "row_mask:0xf bank_mask:0xf"

HEADER = """\
;
; Workgroup w < 256 (one wave) owns 4096 keys of kv head w>>4 and serves both of its query heads.
;   phase K : stream the keys, scores by MFMA, raw scores kept in LDS, exact chunk maximum
;   phase V : stream the values, p = exp2(c*s - c*max) as bf16, accumulate by MFMA
;   combine : every workgroup leaves (acc, max, sum) in the workspace; the one that takes the last arrival
;             number of its head merges the 16 records, normalises and writes the output
; The loops exist in five copies that differ only in how many loads stay in flight (HBM runs best just
; below queue saturation).  Progress words and sparse arrival numbers pick the copy so that all workgroups
; finish together.  These words are hints only: the keys each workgroup handles, the order of every sum,
; and therefore the result do not depend on them or on where a workgroup is placed.
; Hand-off: a record is first filled with all-ones words by its owner, which takes its arrival number later;
; records are written and read with sc1, and the merging wave reloads until no all-ones word is left.
; Workgroup 256 clears the counters in the workspace and then raises a flag in d_debug; no counter is used
; before that flag has been seen.  All 257 single-wave workgroups are co-resident (four fit on one CU)."""


def f32(x):
    return "0x%08x" % struct.unpack("<I", struct.pack("<f", x))[0]


class Regs:
    def __init__(self, start):
        self.n = start

    def take(self, cnt, align=1):
        self.n = (self.n + align - 1) // align * align
        r = self.n
        self.n += cnt
        return r


def vr(a, n=1):
    return f"v{a}" if n == 1 else f"v[{a}:{a + n - 1}]"


def sr(a, n=1):
    return f"s{a}" if n == 1 else f"s[{a}:{a + n - 1}]"


def gen(RK="20.21.22.23.25", RV=None, rd=16, use=14, lo=6, hi=3, T=4, t0=8, kp=2, dn=1, off=0, rot=5,
        cs="2.3.1.3.4.6.7", ea=8, s0=32, early=1, stamps=0, mini=0, trace=0, table=0, amp="", ampwg=77, ampbase=0, ampx=20, ampfrom=-1, dw=7, first=4, near=1, dbl=0, gap=0, gm=6, al=3, esc=0, mem=2, dh=0, ps=0, fl="nt", tb=0, lu=0, ld=0, lmax=6, lmin=0, dm=7, memp=0, pmax=8, sa=26, bt=99, ahead=23, sh=-1, pd=0, pm=1, wq=2, fa=5, em=0, dly=0, ack=-1, pf=0, pq=0, rl=0, rh=1, cft=0, cfd=2, sm=0, d1=8, d2=6, xl=1, pr=0, law=1, th="m4.m1.2.5", zs=0, slim=0, per=3):
    def windows(spec):
        return [(int(x.rstrip("h")), int(x.rstrip("h")) + x.endswith("h")) for x in str(spec).split(".")]

    RK = windows(RK)
    RV = windows(RV) if RV else RK
    D = max(max(x) for x in RK + RV) + 1
    NM = len(RK)
    ths = [int(x.replace("m", "-")) for x in th.split(".")] if th else None
    assert NM == 3 or (law and len(ths) == NM - 1)
    mid = sum(t < 0 for t in ths) if ths else 1
    if slim:
        use = rd + D + 1 - NR + (12 + per - 1) // per
    if sm:
        rd, use = sm, 28
        assert rd - d1 >= 0 and rd + d2 < NR and rd < 22
    assert D <= NR and (use - 3 + NR - rd) > D and use >= 3 and 26 <= s0 <= NR and ps < rd and tb < D and use - 3 >= NR - D
    cs = ([int(x) for x in cs.split(".")] + [0] * 7)[:7]
    hsh = [sum(c for i, c in enumerate(cs[:4]) if h >> i & 1) for h in range(16)]
    xsh = [sum(c for i, c in enumerate(cs[4:]) if x >> i & 1) for x in range(8)]
    assert max(hsh) < 16 and max(xsh) < 256
    scale = 128 ** -0.5
    cexp = scale * 1.4426950408889634
    slot = 1024
    t0m = t0 - 1
    if table:
        if table == 1:
            lo, hi, kp, dn, off, T, t0m, mem = (f"s{80 + i}" for i in range(8))
        else:
            lo, hi, off, lu, ld, lmax, lmin, dm = (f"s{80 + i}" for i in range(8))

    o = []
    e = o.append

    sQ, sKp, sVp, sKT, sVT, sMK, sOUT, sDBG, sWS = 4, 6, 8, 10, 12, 14, 16, 18, 20
    sS, sW, sY, sPR, sPW, sPB = 24, 28, 32, 36, 40, 44
    sHEAD, sCH, sC, sIT, sT0, sT1, sBASE, sO, sB0, sREG, sVB = 48, 49, 50, 51, 52, 53, 54, 55, 56, 57, 58
    sAH, sBH, sBI, sBL, sTK, sTB, sAT, sNM, sREC = 60, 61, 62, 63, 64, 65, 66, 67, 68
    sLV = 69
    sOWN, sST = 69, 22
    sPN, sPT, sHO = 22, 23, 3
    sTAB = 70
    sTS, sTR, sACC = 88, 96, 98

    R = Regs(1)
    vOff = R.take(1)
    vLin = R.take(1)
    vLds = R.take(1)
    vML = R.take(2, 2)
    vMc, vL = vML, vML + 1
    vT = R.take(4, 2)
    vMax = R.take(1)
    vXa = R.take(1)
    vXb = R.take(1)
    vXT = R.take(1)
    vE = R.take(1)
    vP = R.take(1)
    vBc = R.take(1)
    vPo = R.take(1)
    vPg = R.take(1)
    vPs = R.take(1)
    vFl = R.take(1)
    vTr = R.take(1)
    vX = R.take(4, 4)
    vAcc = R.take(4, 4)
    vSel = R.take(4, 4)
    vQ = R.take(8, 4)
    vD = R.take(16, 4)
    vB = vD
    vVT = R.take(4, 4)
    vKT = R.take(4, 4)
    ring = R.take(4 * NR, 4)
    nv = R.n
    vLane = 0

    def rg(k):
        return vr(ring + 4 * k, 4)

    def load(k):
        e(f"    buffer_load_dwordx4 {rg(k)}, {vr(vOff)}, {sr(sS, 4)}, {sr(sO)} offen offset:{(k % 4) * 1024} {fl}")

    def setoff(k, base):
        if k % 4 == 0:
            e(f"    s_add_u32 {sr(sO)}, {sr(base)}, {sr(sTAB + k // 4)}")
            e(f"    s_and_b32 {sr(sO)}, {sr(sO)}, {2 * MiB - 1:#x}")

    def zero_lines():
        e(f"    s_add_u32 {sr(sPB)}, {sr(sWS)}, {48 * HW}")
        e(f"    s_addc_u32 {sr(sPB + 1)}, {sr(sWS + 1)}, 0")
        e(f"    s_movk_i32 {sr(sPB + 2)}, 256")
        e(f"    s_mov_b32 {sr(sPB + 3)}, 0x20000")
        e(f"    v_lshlrev_b32 {vr(vPo)}, 2, {vr(vLane)}")
        e(f"    v_mov_b32 {vr(vPg)}, 0")
        e(f"    buffer_store_dword {vr(vPg)}, {vr(vPo)}, {sr(sPB, 4)}, 0 offen")

    def tab(u):
        e(f"    s_add_u32 {sr(sT0)}, {sr(sTAB)}, {u * 4096:#x}")
        e(f"    s_and_b32 {sr(sT1)}, {sr(sT0)}, 0x8000")
        e(f"    s_add_u32 {sr(sTAB + u)}, {sr(sT0)}, {sr(sT1)}")

    e(HEADER)
    e(f"; @launch grid=({NWG + 1},1,1) block=(64,1,1) lds={NIT * slot}")
    e('.amdgcn_target "amdgcn-amd-amdhsa--gfx950"')
    e(".text")
    e(f".globl {NAME}_kernel")
    e(".p2align 8")
    e(f".type {NAME}_kernel,@function")
    e(f"{NAME}_kernel:")
    e("    s_load_dwordx16 s[4:19], s[0:1], 0")
    e("    s_load_dwordx2 s[20:21], s[0:1], 64")
    if stamps or mini or amp:
        e(f"    s_memrealtime {sr(sTS, 2)}")

    def mark(name):
        if amp == name:
            e(f"    s_memrealtime {sr(sTS + 2, 2)}")
    e(f"    s_cmp_ge_u32 s2, {NWG}")
    e("    s_cbranch_scc1 L_extra")
    if dw:
        e("    ; each workgroup reads a few lines of this code as data, so that first executions find it in L2")
        e(f"    s_getpc_b64 {sr(sAH, 2)}")
        e("L_pc0:")
        e(f"    s_lshr_b32 {sr(sT0)}, s2, 3")
        e(f"    s_mul_i32 {sr(sT0)}, {sr(sT0)}, {dw * 128}")
        e(f"    v_lshl_add_u32 {vr(vML)}, {vr(vLane)}, 7, {sr(sT0)}")
        e(f"    v_min_u32 {vr(vML)}, L_code_end-L_pc0-4, {vr(vML)}")
        e(f"    v_mov_b32 {vr(vML + 1)}, 0")
        e(f"    v_lshl_add_u64 {vr(vML, 2)}, {vr(vML, 2)}, 0, {sr(sAH, 2)}")
        e(f"    s_mov_b64 exec, {(1 << dw) - 1}")
        e(f"    global_load_dword {vr(vBc)}, {vr(vML, 2)}, off")
        e("    s_mov_b64 exec, -1")
    e("    ; workgroups w and w^8 share a 2 MiB region in alternating 32 KiB blocks; each pair starts its walk")
    e("    ; a few 4 KiB steps into the region and wraps at its end")
    e(f"    s_lshr_b32 {sr(sHEAD)}, s2, 4")
    e(f"    s_and_b32 {sr(sBL)}, s2, 7")
    hw = sum(v << (4 * h) for h, v in enumerate(hsh))
    e(f"    s_mov_b32 {sr(sT0)}, {hw & 0xffffffff:#x}")
    e(f"    s_mov_b32 {sr(sT1)}, {hw >> 32:#x}")
    e(f"    s_lshl_b32 {sr(sO)}, {sr(sHEAD)}, 2")
    e(f"    s_lshr_b64 {sr(sT0, 2)}, {sr(sT0, 2)}, {sr(sO)}")
    e(f"    s_and_b32 {sr(sTAB)}, {sr(sT0)}, 15")
    if any(xsh):
        xw = sum(v << (8 * x) for x, v in enumerate(xsh))
        e(f"    s_mov_b32 {sr(sT0)}, {xw & 0xffffffff:#x}")
        e(f"    s_mov_b32 {sr(sT1)}, {xw >> 32:#x}")
        e(f"    s_lshl_b32 {sr(sO)}, {sr(sBL)}, 3")
        e(f"    s_lshr_b64 {sr(sT0, 2)}, {sr(sT0, 2)}, {sr(sO)}")
        e(f"    s_and_b32 {sr(sT0)}, {sr(sT0)}, 0xff")
        e(f"    s_add_u32 {sr(sTAB)}, {sr(sTAB)}, {sr(sT0)}")
    if table:
        e("    s_waitcnt lgkmcnt(0)")
        e(f"    s_lshl2_add_u32 {sr(sT1)}, s2, 256")
        e(f"    s_load_dword {sr(sTAB)}, {sr(sMK, 2)}, {sr(sT1)}")
        e(f"    s_load_dwordx8 s[80:87], {sr(sMK, 2)}, 2048")
        e("    s_waitcnt lgkmcnt(0)")
    e(f"    s_andn2_b32 {sr(sT0)}, {sr(sTAB)}, 7")
    e(f"    s_and_b32 {sr(sT1)}, s2, 8")
    e(f"    s_lshl1_add_u32 {sr(sB0)}, {sr(sT0)}, {sr(sT1)}")
    e(f"    s_lshl_b32 {sr(sB0)}, {sr(sB0)}, 12")
    e(f"    s_and_b32 {sr(sTAB)}, {sr(sTAB)}, 7")
    e(f"    s_lshl_b32 {sr(sTAB)}, {sr(sTAB)}, 12")
    e(f"    s_lshl3_add_u32 {sr(sREG)}, {sr(sHEAD)}, {sr(sBL)}")
    e(f"    s_lshl_b32 {sr(sREG)}, {sr(sREG)}, 21")
    e(f"    s_mov_b32 {sr(sS + 2)}, {2 * MiB:#x}")
    e(f"    s_mov_b32 {sr(sS + 3)}, 0x20000")
    e(f"    v_and_b32 {vr(vT)}, 3, {vr(vLane)}")
    e(f"    v_bfe_u32 {vr(vT + 1)}, {vr(vLane)}, 2, 2")
    e(f"    v_lshrrev_b32 {vr(vT + 2)}, 4, {vr(vLane)}")
    e(f"    v_lshlrev_b32 {vr(vOff)}, 4, {vr(vT)}")
    e(f"    v_lshl_add_u32 {vr(vOff)}, {vr(vT + 1)}, 8, {vr(vOff)}")
    e(f"    v_lshl_add_u32 {vr(vOff)}, {vr(vT + 2)}, 6, {vr(vOff)}")
    if early:
        for u in range(1, 8):
            tab(u)
        e(f"    v_and_b32 {vr(vT)}, 1, {vr(vLane)}")
        e(f"    v_lshlrev_b32 {vr(vT)}, 8, {vr(vT)}")
        e(f"    v_lshl_add_u32 {vr(vT)}, {vr(vT + 1)}, 4, {vr(vT)}")
        e(f"    v_lshl_add_u32 {vr(vT)}, {vr(vT + 2)}, 6, {vr(vT)}")
        e(f"    v_lshlrev_b32 {vr(vLin)}, 4, {vr(vLane)}")
        e(f"    s_lshl_b32 {sr(sT0)}, {sr(sHEAD)}, 9")
        e(f"    s_lshl_b32 {sr(sT1)}, {sr(sHEAD)}, 8")
        e(f"    s_movk_i32 {sr(sPR + 2)}, 512")
        e(f"    s_mov_b32 {sr(sPR + 3)}, 0x20000")
        e(f"    s_movk_i32 {sr(sY + 2)}, 256")
        e(f"    s_mov_b32 {sr(sY + 3)}, 0x20000")
        setoff(0, sB0)
        e("    s_waitcnt lgkmcnt(0)")
        e(f"    s_add_u32 {sr(sS)}, {sr(sKp)}, {sr(sREG)}")
        e(f"    s_addc_u32 {sr(sS + 1)}, {sr(sKp + 1)}, 0")
        mark("arg")
        for k in range(first):
            if k:
                setoff(k, sB0)
            load(k)
        e(f"    s_add_u32 {sr(sPR)}, {sr(sQ)}, {sr(sT0)}")
        e(f"    s_addc_u32 {sr(sPR + 1)}, {sr(sQ + 1)}, 0")
        e(f"    buffer_load_dwordx4 {vr(vQ, 4)}, {vr(vT)}, {sr(sPR, 4)}, 0 offen")
        e(f"    s_add_u32 {sr(sY)}, {sr(sKT)}, {sr(sT1)}")
        e(f"    s_addc_u32 {sr(sY + 1)}, {sr(sKT + 1)}, 0")
        e(f"    buffer_load_dwordx4 {vr(vKT, 4)}, {vr(vOff)}, {sr(sY, 4)}, 0 offen")
        e(f"    s_add_u32 {sr(sY)}, {sr(sVT)}, {sr(sT1)}")
        e(f"    s_addc_u32 {sr(sY + 1)}, {sr(sVT + 1)}, 0")
        e(f"    buffer_load_dwordx4 {vr(vVT, 4)}, {vr(vLin)}, {sr(sY, 4)}, 0 offen")
        e(f"    s_mov_b64 {sr(sPR, 2)}, {sr(sMK, 2)}")
        e(f"    s_mov_b32 {sr(sPR + 2)}, 2")
        e(f"    buffer_load_ushort {vr(vXT)}, off, {sr(sPR, 4)}, 0")
        for k in range(first, D):
            if k == zs:
                zero_lines()
            if k:
                setoff(k, sB0)
            load(k)
    else:
        setoff(0, sB0)
        e("    s_waitcnt lgkmcnt(0)")
        e(f"    s_add_u32 {sr(sS)}, {sr(sKp)}, {sr(sREG)}")
        e(f"    s_addc_u32 {sr(sS + 1)}, {sr(sKp + 1)}, 0")
        load(0)
        e(f"    v_and_b32 {vr(vT)}, 1, {vr(vLane)}")
        e(f"    v_lshlrev_b32 {vr(vT)}, 8, {vr(vT)}")
        load(1)
        e(f"    v_lshl_add_u32 {vr(vT)}, {vr(vT + 1)}, 4, {vr(vT)}")
        e(f"    v_lshl_add_u32 {vr(vT)}, {vr(vT + 2)}, 6, {vr(vT)}")
        e(f"    s_lshl_b32 {sr(sT1)}, {sr(sHEAD)}, 9")
        load(2)
        e(f"    s_add_u32 {sr(sPR)}, {sr(sQ)}, {sr(sT1)}")
        e(f"    s_addc_u32 {sr(sPR + 1)}, {sr(sQ + 1)}, 0")
        e(f"    s_movk_i32 {sr(sPR + 2)}, 512")
        load(3)
        e(f"    s_mov_b32 {sr(sPR + 3)}, 0x20000")
        e(f"    s_lshl_b32 {sr(sT1)}, {sr(sHEAD)}, 8")
        e(f"    s_movk_i32 {sr(sY + 2)}, 256")
        e(f"    buffer_load_dwordx4 {vr(vQ, 4)}, {vr(vT)}, {sr(sPR, 4)}, 0 offen")
        e(f"    s_add_u32 {sr(sY)}, {sr(sKT)}, {sr(sT1)}")
        e(f"    s_addc_u32 {sr(sY + 1)}, {sr(sKT + 1)}, 0")
        e(f"    s_mov_b32 {sr(sY + 3)}, 0x20000")
        e(f"    buffer_load_dwordx4 {vr(vKT, 4)}, {vr(vOff)}, {sr(sY, 4)}, 0 offen")
        e(f"    v_lshlrev_b32 {vr(vLin)}, 4, {vr(vLane)}")
        e(f"    s_add_u32 {sr(sY)}, {sr(sVT)}, {sr(sT1)}")
        e(f"    s_addc_u32 {sr(sY + 1)}, {sr(sVT + 1)}, 0")
        e(f"    buffer_load_dwordx4 {vr(vVT, 4)}, {vr(vLin)}, {sr(sY, 4)}, 0 offen")
        e(f"    s_mov_b64 {sr(sPR, 2)}, {sr(sMK, 2)}")
        e(f"    s_mov_b32 {sr(sPR + 2)}, 2")
        e(f"    buffer_load_ushort {vr(vXT)}, off, {sr(sPR, 4)}, 0")
        tab(1)
        for k in range(4, D):
            setoff(k, sB0)
            load(k)
            if k % 4 == 1 and k // 4 < 7:
                tab(k // 4 + 1)
        for u in range((D - 2) // 4 + 2, 8):
            tab(u)
    e("    ; workspace per head: 16 records, then the arrival counter; the own record is filled with an")
    e("    ; all-ones pattern that no stored result can equal")
    e(f"    s_and_b32 {sr(sCH)}, s2, 15")
    e(f"    s_mul_i32 {sr(sREC)}, {sr(sHEAD)}, {HW}")
    e(f"    s_add_u32 {sr(sW)}, {sr(sWS)}, {sr(sREC)}")
    e(f"    s_addc_u32 {sr(sW + 1)}, {sr(sWS + 1)}, 0")
    e(f"    s_mov_b32 {sr(sW + 2)}, {HW}")
    e(f"    s_mov_b32 {sr(sW + 3)}, 0x20000")
    e(f"    s_mul_i32 {sr(sREC)}, {sr(sCH)}, {SLOT}")
    for j in range(4):
        e(f"    v_mov_b32 {vr(vAcc + j)}, -1")
    e(f"    buffer_store_dwordx4 {vr(vAcc, 4)}, {vr(vLin)}, {sr(sW, 4)}, {sr(sREC)} offen sc1")
    e("    s_mov_b64 exec, 0xff")
    e(f"    buffer_store_dwordx4 {vr(vAcc, 4)}, {vr(vLin)}, {sr(sW, 4)}, {sr(sREC)} offen offset:1024 sc1")
    e("    s_mov_b64 exec, -1")
    e(f"    s_add_u32 {sr(sVB)}, {sr(sVp)}, {sr(sREG)}")
    e(f"    s_addc_u32 {sr(sVB + 1)}, {sr(sVp + 1)}, 0")
    if mini:
        e("    s_cmp_ge_u32 s2, 8")
        e("    s_cbranch_scc1 L_nomini")
        e(f"    s_lshl_b32 {sr(sT1)}, s2, 8")
        e(f"    s_add_u32 {sr(sT1)}, {sr(sT1)}, 0x100000")
        e(f"    v_mov_b32 {vr(vT + 1)}, {sr(sT1)}")
        e(f"    v_mov_b32 {vr(vT + 2)}, {sr(sTS)}")
        e(f"    v_mov_b32 {vr(vT + 3)}, {sr(sTS + 1)}")
        e("    s_mov_b64 exec, 1")
        e(f"    global_store_dwordx2 {vr(vT + 1)}, {vr(vT + 2, 2)}, {sr(sWS, 2)} sc1")
        e("    s_mov_b64 exec, -1")
        e("L_nomini:")
    e(f"    s_mov_b32 {sr(sBASE)}, {sr(sB0)}")
    e(f"    s_mov_b32 {sr(sC)}, {f32(cexp)}")
    e(f"    s_mov_b32 {sr(sIT)}, 0")
    if lu:
        e(f"    s_mov_b32 {sr(sLV)}, 0")
    if xl:
        e("    ; progress words: two workspace lines, zeroed here by every workgroup before anything reads them; a")
        e("    ; workgroup writes slot w>>4 of line (w>>3)&1 and reads the other line; slot 16+(w&7) = bias of the group")
    else:
        e("    ; progress words: 16-bit slots at d_debug+128, slot w>>3 = own iteration count, slot 32+(w&7) = bias")
    e(f"    s_mov_b64 {sr(sY, 2)}, {sr(sDBG, 2)}")
    e(f"    s_mov_b32 {sr(sY + 2)}, 4")
    if xl:
        XO = 48 * HW
        if not zs:
            zero_lines()
        e(f"    s_and_b32 {sr(sT1)}, s2, 8")
        e(f"    s_lshl_b32 {sr(sT1)}, {sr(sT1)}, 4")
        e(f"    s_lshl1_add_u32 {sr(sT0)}, {sr(sHEAD)}, {sr(sT1)}")
        e(f"    s_add_u32 {sr(sPW)}, {sr(sPB)}, {sr(sT0)}")
        e(f"    s_addc_u32 {sr(sPW + 1)}, {sr(sPB + 1)}, 0")
        e(f"    s_xor_b32 {sr(sT1)}, {sr(sT1)}, 128")
        e(f"    s_add_u32 {sr(sPR)}, {sr(sPB)}, {sr(sT1)}")
        e(f"    s_addc_u32 {sr(sPR + 1)}, {sr(sPB + 1)}, 0")
        e(f"    s_movk_i32 {sr(sPR + 2)}, {80 if slim else 48}")
        e(f"    s_add_u32 {sr(sBL)}, {sr(sBL)}, {32 if slim else 16}")
        e(f"    s_lshl1_add_u32 {sr(sPB)}, {sr(sBL)}, {sr(sPB)}")
        e(f"    s_addc_u32 {sr(sPB + 1)}, {sr(sPB + 1)}, 0")
        e(f"    s_movk_i32 {sr(sPB + 2)}, 130")
        e(f"    s_mov_b32 {sr(sPW + 2)}, 2")
        e(f"    s_lshr_b32 {sr(sT0)}, s2, 3")
        if pr:
            e(f"    s_mov_b32 {sr(sHO)}, 0")
    else:
        e(f"    s_add_u32 {sr(sPR)}, {sr(sDBG)}, 128")
        e(f"    s_addc_u32 {sr(sPR + 1)}, {sr(sDBG + 1)}, 0")
        e(f"    s_movk_i32 {sr(sPR + 2)}, {64 if cft else 80}")
        e(f"    s_lshr_b32 {sr(sT0)}, s2, 3")
        if rl:
            e(f"    s_xor_b32 {sr(sPN)}, {sr(sT0)}, 1")
            e(f"    s_mov_b32 {sr(sHO)}, 0")
        if sm:
            e(f"    s_add_u32 {sr(sPW)}, {sr(sT0)}, {sr(sPR)}")
            e(f"    s_addc_u32 {sr(sPW + 1)}, {sr(sPR + 1)}, 0")
            e(f"    s_lshl2_add_u32 {sr(sBL)}, {sr(sBL)}, 32")
            e(f"    s_add_u32 {sr(sPB)}, {sr(sBL)}, {sr(sPR)}")
        else:
            e(f"    s_lshl1_add_u32 {sr(sPW)}, {sr(sT0)}, {sr(sPR)}")
            e(f"    s_addc_u32 {sr(sPW + 1)}, {sr(sPR + 1)}, 0")
            e(f"    s_add_u32 {sr(sBL)}, {sr(sBL)}, 32")
            e(f"    s_lshl1_add_u32 {sr(sPB)}, {sr(sBL)}, {sr(sPR)}")
        e(f"    s_addc_u32 {sr(sPB + 1)}, {sr(sPR + 1)}, 0")
        e(f"    s_and_b32 {sr(sT1)}, {sr(sDBG)}, 127")
        e(f"    s_cselect_b32 {sr(sPW + 2)}, 0, {1 if sm else 2}")
        e(f"    s_cselect_b32 {sr(sPB + 2)}, 0, 2")
    e(f"    s_mov_b32 {sr(sPW + 3)}, 0x20000")
    e(f"    s_mov_b32 {sr(sPB + 3)}, 0x20000")
    e("    ; round in which this workgroup takes an arrival number for its group of 32, and that round's counter")
    e(f"    s_mul_i32 {sr(sTK)}, {sr(sT0)}, {pow(rot, -1, 32)}")
    e(f"    s_and_b32 {sr(sTK)}, {sr(sTK)}, 31")
    e(f"    s_mul_i32 {sr(sTB)}, {sr(sTK)}, {HW}")
    e(f"    s_add_u32 {sr(sTB)}, {sr(sTB)}, {16 * SLOT + 16 * HW}")
    e(f"    s_mul_i32 {sr(sTK)}, {sr(sTK)}, {T}")
    e(f"    s_add_u32 {sr(sTK)}, {sr(sTK)}, {t0m}")
    e(f"    s_cmp_ge_u32 {sr(sTK)}, {2 * NIT - 5}")
    e(f"    s_cselect_b32 {sr(sTK)}, 0x7fff, {sr(sTK)}")
    e(f"    v_lshlrev_b32 {vr(vPo)}, 1, {vr(vLane)}")
    e(f"    v_mov_b32 {vr(vPg)}, 0")
    if slim:
        assert xl and law and th == "m4.m1.2.5" and rd + d2 < NR
        e(f"    s_mov_b32 {sr(sOWN)}, -3")
        e(f"    s_mov_b32 {sr(sST)}, 0")
        e(f"    v_subrev_u32 {vr(vPs)}, 16, {vr(vLane)}")
        e(f"    v_ashrrev_i32 {vr(vPs)}, 31, {vr(vPs)}")
    else:
        e(f"    v_mov_b32 {vr(vPs)}, 0")
    e(f"    v_mov_b32 {vr(vLds)}, {vr(vLin)}")
    e("    ; byte selectors of the probability operand: row lane&15 = (head, element)")
    e(f"    v_bfe_u32 {vr(vT)}, {vr(vLane)}, 3, 1")
    e(f"    v_mul_u32_u24 {vr(vT)}, 0x0202, {vr(vT)}")
    e(f"    v_add_u32 {vr(vT)}, 0x0100, {vr(vT)}")
    e(f"    v_xor_b32 {vr(vT)}, 0x0c0c, {vr(vT)}")
    e(f"    v_and_b32 {vr(vT + 1)}, 1, {vr(vLane)}")
    e(f"    v_lshlrev_b32 {vr(vT + 1)}, 4, {vr(vT + 1)}")
    e(f"    v_lshlrev_b32 {vr(vT)}, {vr(vT + 1)}, {vr(vT)}")
    e(f"    v_xor_b32 {vr(vT)}, 0x0c0c0c0c, {vr(vT)}")
    e(f"    v_bfe_u32 {vr(vT + 1)}, {vr(vLane)}, 1, 2")
    e(f"    v_mov_b32 {vr(vT + 2)}, 0x0c0c0c0c")
    for t in range(4):
        e(f"    v_cmp_eq_u32 vcc, {t}, {vr(vT + 1)}")
        e("    s_nop 1")
        e(f"    v_cndmask_b32 {vr(vSel + t)}, {vr(vT + 2)}, {vr(vT)}, vcc")
    e("    ; q split into two column-masked operands (column bit 1 selects the load of a pair)")
    e(f"    v_and_b32 {vr(vT)}, 2, {vr(vLane)}")
    e(f"    v_cmp_eq_u32 vcc, 0, {vr(vT)}")
    e("    s_nop 0")
    mark("setup")
    e(f"    s_waitcnt vmcnt({D - max(first, 1)})")
    mark("data")
    for j in range(4):
        e(f"    v_cndmask_b32 {vr(vQ + 4 + j)}, {vr(vQ + j)}, 0, vcc")
    for j in range(4):
        e(f"    v_cndmask_b32 {vr(vQ + j)}, 0, {vr(vQ + j)}, vcc")
    e("    ; tree token score with its mask bias, valid in lanes 0 and 1 of chunk 0")
    e(f"    v_lshlrev_b32 {vr(vXT)}, 16, {vr(vXT)}")
    e(f"    v_sub_f32 {vr(vXT)}, 1.0, {vr(vXT)}")
    e(f"    v_mfma_f32_16x16x32_bf16 {vr(vD, 4)}, {vr(vKT, 4)}, {vr(vQ, 4)}, 0")
    e(f"    v_mul_f32 {vr(vXT)}, {f32(-1e9 / scale)}, {vr(vXT)}")
    e(f"    s_cmp_eq_u32 {sr(sCH)}, 0")
    e(f"    s_cselect_b64 vcc, 3, 0")
    e(f"    v_mov_b32 {vr(vMax)}, {NEG_INF}")
    e("    s_nop 4")
    e(f"    v_add_f32 {vr(vXT)}, {vr(vXT)}, {vr(vD)}")
    e(f"    v_mov_b32_dpp {vr(vT)}, {vr(vD + 1)} row_ror:12 {ALL}")
    e(f"    v_mov_b32_dpp {vr(vT + 1)}, {vr(vD + 2)} row_ror:8 {ALL}")
    e(f"    v_mov_b32_dpp {vr(vT + 2)}, {vr(vD + 3)} row_ror:4 {ALL}")
    e(f"    v_add_f32 {vr(vXT)}, {vr(vXT)}, {vr(vT)}")
    e(f"    v_add_f32 {vr(vT + 1)}, {vr(vT + 1)}, {vr(vT + 2)}")
    e(f"    v_add_f32 {vr(vXT)}, {vr(vXT)}, {vr(vT + 1)}")
    e(f"    v_cndmask_b32 {vr(vXT)}, {vr(vMax)}, {vr(vXT)}, vcc")
    e(f"    v_mov_b32 {vr(vMax)}, {vr(vXT)}")
    if trace:
        e("    s_mov_b32 m0, 0")
    if stamps:
        e(f"    s_mov_b32 {sr(sACC)}, 0")

    def dppctl(t, j):
        n = (4 * (t - j)) % 16
        c = "quad_perm:[0,1,2,3]" if n == 0 else f"row_ror:{n}"
        return f"{c} row_mask:0xf bank_mask:{1 << t:#x}"

    def red1(p):
        t = p % 4
        e(f"    v_mov_b32_dpp {vr(vXa)}, {vr(vD + 4 * t)} {dppctl(t, 0)}")
        e(f"    v_mov_b32_dpp {vr(vXb)}, {vr(vD + 4 * t + 1)} {dppctl(t, 1)}")

    def red2(p):
        t = p % 4
        e(f"    v_add_f32_dpp {vr(vXa)}, {vr(vD + 4 * t + 2)}, {vr(vXa)} {dppctl(t, 2)}")
        e(f"    v_add_f32_dpp {vr(vXb)}, {vr(vD + 4 * t + 3)}, {vr(vXb)} {dppctl(t, 3)}")
        if t == 3:
            e(f"    v_add_f32 {vr(vX + p // 4)}, {vr(vXa)}, {vr(vXb)}")

    def probes(ph, m, k):
        if amp.startswith("it") and k == 26:
            e(f"    s_cmp_lg_u32 {sr(sIT)}, {int(amp[2:])}")
            e(f"    s_cbranch_scc1 L_{ph}{m}_na")
            mark(amp)
            e(f"L_{ph}{m}_na:")
        if 0 <= ampfrom < 100 and k == 26:
            e(f"    s_cmp_lg_u32 {sr(sIT)}, {ampfrom}")
            e(f"    s_cbranch_scc1 L_{ph}{m}_nb")
            e(f"    s_memrealtime {sr(sTS + 4, 2)}")
            e(f"L_{ph}{m}_nb:")
        if trace and k == 26:
            e(f"    s_memrealtime {sr(sTR, 2)}")
        if trace and k == 24:
            e("    s_waitcnt lgkmcnt(0)")
            e(f"    v_writelane_b32 {vr(vTr)}, {sr(sTR)}, m0")
            e("    s_add_u32 m0, m0, 1")

    def control(ph, m, k):
        if slim:
            if k in (rd - d1, rd + d2):
                e(f"    v_add_u32 {vr(vPg)}, 1, {vr(vPg)}")
                e(f"    buffer_store_short {vr(vPg)}, {vr(vPo)}, {sr(sPW, 4)}, 0 offen")
            seq = [f"s_add_u32 {sr(sOWN)}, {sr(sOWN)}, 2",
                   f"v_cmp_lt_u32 vcc, {sr(sOWN)}, {vr(vPs)}",
                   f"s_bcnt1_i32_b32 {sr(sAH)}, vcc_lo",
                   f"v_cmp_gt_u32 vcc, {sr(sOWN)}, {vr(vPs)}",
                   f"s_bcnt0_i32_b32 {sr(sBH)}, vcc_lo",
                   f"v_readlane_b32 {sr(sBI)}, {vr(vPs)}, {sr(sBL)}",
                   f"s_add_i32 {sr(sAH)}, {sr(sAH)}, {sr(sBH)}",
                   f"s_add_i32 {sr(sAH)}, {sr(sAH)}, {sr(sBI)}",
                   f"s_max_i32 {sr(sAH)}, {sr(sAH)}, 12",
                   f"s_min_i32 {sr(sAH)}, {sr(sAH)}, 22",
                   f"s_mul_i32 {sr(sAH)}, {sr(sAH)}, 42",
                   f"s_lshr_b32 {sr(sNM)}, {sr(sAH)}, 7"]
            u0 = rd + D + 1 - NR
            j = k - u0
            assert u0 + 5 // per < rd and use == u0 + (len(seq) + per - 1) // per
            if j >= 0:
                for x in seq[j * per:(j + 1) * per]:
                    e("    " + x)
            if k == use:
                if stamps:
                    e(f"    s_add_u32 {sr(sACC)}, {sr(sACC)}, {sr(sNM)}")
                e(f"    s_cmp_lg_u32 {sr(sNM)}, {m + 3}")
                e(f"    s_cbranch_scc1 L_{ph}_pick")
                e(f"L_{ph}{m}_u:")
            if k == rd:
                e(f"    buffer_load_sshort {vr(vPs)}, {vr(vPo)}, {sr(sPR, 4)}, 0 offen sc1")
            if k == 25:
                e(f"    s_cmp_eq_u32 {sr(sIT)}, {sr(sTK)}")
                e(f"    s_cbranch_scc1 L_{ph}{m}_round")
                e(f"L_{ph}{m}_t:")
            probes(ph, m, k)
            return
        if sm:
            if k in (rd - d1, rd + d2):
                e(f"    v_add_u32 {vr(vPg)}, 1, {vr(vPg)}")
                e(f"    buffer_store_byte {vr(vPg)}, {vr(vPo)}, {sr(sPW, 4)}, 0 offen")
            if k == rd:
                e(f"    s_load_dwordx8 s[4:11], {sr(sPR, 2)}, 0 glc")
                e(f"    s_load_dword {sr(sBI)}, {sr(sPR, 2)}, {sr(sBL)} glc")
            if k == 24:
                if ph == "k":
                    e("    s_waitcnt lgkmcnt(0)")
                for j in range(4):
                    e(f"    v_sad_u8 {vr(vPs)}, s{4 + j}, 0, {vr(vPs) if j else 0}")
            if k == 25:
                for j in range(4, 8):
                    e(f"    v_sad_u8 {vr(vPs)}, s{4 + j}, 0, {vr(vPs)}")
            if k == use - 2:
                e(f"    v_readfirstlane_b32 {sr(sAH)}, {vr(vPs)}")
            if k == use - 1:
                e(f"    s_lshl_b32 {sr(sT0)}, {sr(sIT)}, 6")
                e(f"    s_sub_i32 {sr(sAH)}, {sr(sAH)}, {sr(sT0)}")
        if xl:
            if k in {(rd - d1) % NR, (rd + d2) % NR}:
                e(f"    v_add_u32 {vr(vPg)}, 1, {vr(vPg)}")
                e(f"    buffer_store_short {vr(vPg)}, {vr(vPo)}, {sr(sPW, 4)}, 0 offen")
            if k == use - 3:
                if d1 + d2 == NR:
                    own = sIT
                else:
                    own = sT0
                    assert rd >= d1
                    if rd + d2 >= NR:
                        e(f"    s_lshl_b32 {sr(sT0)}, {sr(sIT)}, 1")
                    else:
                        e(f"    s_lshl1_add_u32 {sr(sT0)}, {sr(sIT)}, -1")
                        e(f"    s_max_i32 {sr(sT0)}, {sr(sT0)}, 0")
                e(f"    v_cmp_lt_u32 vcc, {sr(own)}, {vr(vPs)}")
                e(f"    s_and_b32 {sr(sAH)}, vcc_lo, 0xffff")
                if pr:
                    e(f"    s_bitcmp1_b32 {sr(sAH)}, {sr(sHEAD)}")
                    e(f"    s_cselect_b32 {sr(sPT)}, {sr(sIT)}, 0")
                e(f"    s_bcnt1_i32_b32 {sr(sAH)}, {sr(sAH)}")
                e(f"    v_cmp_gt_u32 vcc, {sr(own)}, {vr(vPs)}")
                e(f"    s_and_b32 {sr(sBH)}, vcc_lo, 0xffff")
                e(f"    s_bcnt1_i32_b32 {sr(sBH)}, {sr(sBH)}")
                e(f"    v_readlane_b32 {sr(sBI)}, {vr(vPs)}, {sr(sBL)}")
        if not sm and not xl and k == ps:
            e(f"    v_add_u32 {vr(vPg)}, 1, {vr(vPg)}")
            e(f"    buffer_store_{'byte' if rl else 'short'} {vr(vPg)}, {vr(vPo)}, {sr(sPW, 4)}, 0 offen")
        if cft and k == rd + cfd:
            e(f"    buffer_store_short {vr(vPg)}, {vr(vPo)}, {sr(sPB if cft == 1 else sPW, 4)}, 0 offen")
        if rl and k == rd + rl:
            e(f"    buffer_store_byte {vr(vPg)}, {vr(vPo)}, {sr(sPW, 4)}, 0 offen offset:1")
        if not sm and not xl and k == use - 3:
            cnt = vPs
            if rl:
                cnt = vT + 3
                e(f"    v_and_b32 {vr(cnt)}, 0xff, {vr(vPs)}")
                e(f"    v_readlane_b32 {sr(sPT)}, {vr(vPs)}, {sr(sPN)}")
            e(f"    v_cmp_lt_u32 vcc, {sr(sIT)}, {vr(cnt)}")
            e(f"    s_bcnt1_i32_b32 {sr(sAH)}, vcc_lo")
            e(f"    v_cmp_gt_u32 vcc, {sr(sIT)}, {vr(cnt)}")
            e(f"    s_bcnt1_i32_b32 {sr(sBH)}, vcc_lo")
            e(f"    v_readlane_b32 {sr(sBI)}, {vr(vPs)}, {sr(sBL)}")
        if law and k == use - 1:
            e(f"    s_sext_i32_i16 {sr(sT1)}, {sr(sBI)}")
            e(f"    s_sub_i32 {sr(sAH)}, {sr(sAH)}, {sr(sBH)}")
            e(f"    s_add_i32 {sr(sAH)}, {sr(sAH)}, {sr(sT1)}")
            if ths:
                for n, t in enumerate(ths):
                    e(f"    s_cmp_gt_i32 {sr(sAH)}, {t}")
                    e(f"    s_cselect_b32 {sr(sNM)}, {n + 1}, {sr(sNM) if n else 0}")
            else:
                e(f"    s_cmp_gt_i32 {sr(sAH)}, {hi}")
                e(f"    s_cselect_b32 {sr(sNM)}, 2, 1")
                e(f"    s_cmp_lt_i32 {sr(sAH)}, {lo if table else -lo}")
                e(f"    s_cselect_b32 {sr(sNM)}, 0, {sr(sNM)}")
        if not law and k == use - 2:
            e(f"    s_mul_i32 {sr(sT0)}, {sr(sIT)}, 5")
            e(f"    s_add_u32 {sr(sT0)}, {sr(sT0)}, {sr(sHEAD)}")
            e(f"    s_and_b32 {sr(sT0)}, {sr(sT0)}, 15")
            e(f"    s_sext_i32_i16 {sr(sT1)}, {sr(sBI)}")
            if lu:
                e(f"    s_add_i32 {sr(sT1)}, {sr(sT1)}, {sr(sLV)}")
            e(f"    s_cmp_lt_i32 {sr(sT0)}, {sr(sT1)}")
            e(f"    s_cselect_b32 {sr(sNM)}, 2, 1")
            e(f"    s_add_i32 {sr(sT1)}, {sr(sT1)}, {sr(sT0)}")
        if not law and k == use - 1:
            e(f"    s_cmp_lt_i32 {sr(sT1)}, 0")
            e(f"    s_cselect_b32 {sr(sNM)}, 0, {sr(sNM)}")
            if rl:
                e(f"    s_lshr_b32 {sr(sPT)}, {sr(sPT)}, 8")
                e(f"    s_cmp_ge_u32 {sr(sPT)}, {sr(sIT)}")
                e(f"    s_cselect_b32 {sr(sPT)}, {sr(sIT)}, 0")
            if rl or pr:
                e(f"    s_add_u32 {sr(sT0)}, {sr(sIT)}, {rh}")
                e(f"    s_cmp_gt_u32 {sr(sPT)}, {sr(sHO)}")
                e(f"    s_cselect_b32 {sr(sHO)}, {sr(sT0)}, {sr(sHO)}")
                e(f"    s_addc_u32 {sr(sNM)}, {sr(sNM)}, 0")
                e(f"    s_min_u32 {sr(sNM)}, {sr(sNM)}, 2")
            if sm:
                e(f"    s_cmp_lt_i32 {sr(sAH)}, {lo if table else 32 - lo}")
            else:
                e(f"    s_cmp_gt_u32 {sr(sBH)}, {lo}")
            e(f"    s_cselect_b32 {sr(sNM)}, 0, {sr(sNM)}")
            if lu:
                e(f"    s_cselect_b32 {sr(sBH)}, {ld}, 0")
            if sm:
                e(f"    s_cmp_gt_i32 {sr(sAH)}, {hi if table else 32 + hi}")
            else:
                e(f"    s_cmp_gt_u32 {sr(sAH)}, {hi}")
            e(f"    s_cselect_b32 {sr(sNM)}, 2, {sr(sNM)}")
            if lu:
                e(f"    s_cselect_b32 {sr(sAH)}, {lu}, 0")
        if lu and k == use + 1:
            e(f"    s_and_b32 {sr(sT0)}, {sr(sIT)}, {dm}")
            e(f"    s_cselect_b32 {sr(sT0)}, 0, {sr(sLV)}")
            e(f"    s_min_i32 {sr(sT0)}, {sr(sT0)}, 1")
            e(f"    s_max_i32 {sr(sT0)}, {sr(sT0)}, -1")
            e(f"    s_sub_i32 {sr(sLV)}, {sr(sLV)}, {sr(sT0)}")
        if lu and k == use + 3:
            e(f"    s_add_i32 {sr(sLV)}, {sr(sLV)}, {sr(sAH)}")
            e(f"    s_sub_i32 {sr(sLV)}, {sr(sLV)}, {sr(sBH)}")
            e(f"    s_min_i32 {sr(sLV)}, {sr(sLV)}, {lmax}")
            e(f"    s_max_i32 {sr(sLV)}, {sr(sLV)}, {lmin}")
        if k == use:
            if stamps:
                e(f"    s_add_u32 {sr(sACC)}, {sr(sACC)}, {sr(sNM)}")
            e(f"    s_cmp_lg_u32 {sr(sNM)}, {m}")
            e(f"    s_cbranch_scc1 L_{ph}_pick")
            e(f"L_{ph}{m}_u:")
        if not sm and k == rd:
            e(f"    buffer_load_ushort {vr(vPs)}, {vr(vPo)}, {sr(sPR, 4)}, 0 offen sc1")
        if k == 25:
            e(f"    s_sub_u32 {sr(sT0)}, {sr(sIT)}, {sr(sTK)}")
            e(f"    s_cmp_lt_u32 {sr(sT0)}, {4 if esc else 3}")
            e(f"    s_cbranch_scc1 L_{ph}{m}_round")
            e(f"L_{ph}{m}_t:")
        probes(ph, m, k)

    order = (mid,) + tuple(m for m in range(NM) if m != mid)
    e("    ; ---------------- phase K: two loads share one accumulator, DPP adds gather 32 keys x 2 heads per register")
    for m in order:
        e(f".p2align {al if m == mid else 6}")
        e(f"L_k{m}:")
        for k in range(NR):
            p, g = k // 2, k % 2
            d = vr(vD + 4 * (p % 4), 4)
            e(f"    v_mfma_f32_16x16x32_bf16 {d}, {rg(k)}, {vr(vQ + 4 * g, 4)}, {d if g else 0}")
            if k == NR - D:
                e(f"    s_add_u32 {sr(sBASE)}, {sr(sBASE)}, 0x10000")
                e(f"    s_cmp_lg_u32 {sr(sIT)}, {NIT - 1}")
                e(f"    s_cbranch_scc1 L_k{m}_same")
                e(f"    s_mov_b64 {sr(sS, 2)}, {sr(sVB, 2)}")
                e(f"    v_mov_b32 {vr(vOff)}, {vr(vLin)}")
                e(f"L_k{m}_same:")
            setoff((k + D) % NR, sBASE)
            e(f"    s_waitcnt vmcnt({RK[m][k & 1] - 1})")
            load((k + D) % NR)
            if k >= 3 and k % 2 == 1:
                red1((k - 3) // 2)
            elif k >= 4:
                red2((k - 4) // 2)
            else:
                e("    s_nop 1")
            control("k", m, k)
        e(f"    s_add_u32 {sr(sIT)}, {sr(sIT)}, 1")
        e("    s_nop 0")
        red2(NR // 2 - 2)
        e("    s_nop 1")
        red1(NR // 2 - 1)
        e(f"    s_cmp_lg_u32 {sr(sIT)}, {NIT}")
        red2(NR // 2 - 1)
        e(f"    v_max3_f32 {vr(vMax)}, {vr(vMax)}, {vr(vX)}, {vr(vX + 1)}")
        e(f"    v_max3_f32 {vr(vMax)}, {vr(vMax)}, {vr(vX + 2)}, {vr(vX + 3)}")
        e(f"    ds_write_b128 {vr(vLds)}, {vr(vX, 4)}")
        e(f"    v_add_u32 {vr(vLds)}, {slot}, {vr(vLds)}")
        e(f"    s_cbranch_scc1 L_k{m}")
        if m != order[-1]:
            e("    s_branch L_mid")

    def expand(k, lane):
        e(f"    v_mov_b32_dpp {vr(vBc)}, {vr(vP)} row_newbcast:{lane} {ALL}")
        return [f"    v_perm_b32 {vr(vB + 4 * (k & 1) + t)}, {vr(vBc)}, {vr(vBc)}, {vr(vSel + t)}" for t in range(4)]

    e("L_mid:")
    mid0 = len(o)
    e("    ; chunk maximum per head (lane parity), tree token contribution, first probability operands")
    e(f"    v_mov_b32 {vr(vLds)}, {vr(vLin)}")
    e(f"    ds_read_b128 {vr(vX, 4)}, {vr(vLin)}")
    e(f"    buffer_load_dword {vr(vFl)}, off, {sr(sY, 4)}, 0 sc1")
    for c in ("quad_perm:[2,3,0,1]", "row_ror:4", "row_ror:8"):
        e(f"    v_max_f32_dpp {vr(vMax)}, {vr(vMax)}, {vr(vMax)} {c} {ALL}")
        if c != "row_ror:8":
            e("    s_nop 1")
    for sw in ("v_permlane16_swap_b32", "v_permlane32_swap_b32"):
        e(f"    v_mov_b32 {vr(vT)}, {vr(vMax)}")
        e("    s_nop 1")
        e(f"    {sw} {vr(vMax)}, {vr(vT)}")
        e(f"    v_max_f32 {vr(vMax)}, {vr(vMax)}, {vr(vT)}")
    e(f"    v_mul_f32 {vr(vMc)}, {sr(sC)}, {vr(vMax)}")
    e(f"    v_fma_f32 {vr(vXT)}, {vr(vXT)}, {sr(sC)}, -{vr(vMc)}")
    e(f"    v_exp_f32 {vr(vL)}, {vr(vXT)}")
    e("    s_waitcnt lgkmcnt(0)")
    e(f"    v_fma_f32 {vr(vE)}, {vr(vX)}, {sr(sC)}, -{vr(vMc)}")
    e(f"    v_exp_f32 {vr(vE)}, {vr(vE)}")
    e(f"    v_mov_b32_dpp {vr(vT + 1)}, {vr(vL)} quad_perm:[1,0,3,2] {ALL}")
    e(f"    v_cvt_pk_bf16_f32 {vr(vP)}, {vr(vL)}, {vr(vT + 1)}")
    e(f"    v_mov_b32_dpp {vr(vT)}, {vr(vE)} quad_perm:[1,0,3,2] {ALL}")
    e(f"    v_add_f32 {vr(vL)}, {vr(vL)}, {vr(vE)}")
    for x in expand(1, 0):
        e(x)
    e(f"    v_cvt_pk_bf16_f32 {vr(vP)}, {vr(vE)}, {vr(vT)}")
    e("    s_nop 0")
    e(f"    v_mfma_f32_16x16x32_bf16 {vr(vAcc, 4)}, {vr(vB + 4, 4)}, {vr(vVT, 4)}, 0")
    for x in expand(0, 0):
        e(x)
    for x in expand(1, 2):
        e(x)

    def pstage(k):
        s = k % 8
        if s == 0:
            e(f"    v_fma_f32 {vr(vE)}, {vr(vX + (k // 8 + 1) % 4)}, {sr(sC)}, -{vr(vMc)}")
        elif s == 1:
            e(f"    v_exp_f32 {vr(vE)}, {vr(vE)}")
        elif s == 2:
            e(f"    v_add_f32 {vr(vL)}, {vr(vL)}, {vr(vE)}")
        elif s == 3:
            e(f"    v_mov_b32_dpp {vr(vT)}, {vr(vE)} quad_perm:[1,0,3,2] {ALL}")
        elif s == 5:
            e(f"    v_cvt_pk_bf16_f32 {vr(vP)}, {vr(vE)}, {vr(vT)}")

    def pv(k):
        e(f"    v_mfma_f32_16x16x32_bf16 {vr(vAcc, 4)}, {vr(vB + 4 * (k & 1), 4)}, {rg(k)}, {vr(vAcc, 4)}")

    e("    ; ---------------- phase V: one MFMA per load, A = probabilities on a diagonal, B = four value rows")
    if tb:
        nmid = len(o) - mid0 - 1
        for k in range(NR - D):
            pv(k)
            perms = expand(k + 2, 2 * ((k + 2) % 8))
            pstage(k)
            for x in perms:
                e(x)
            control("v", 1, k)
        body = o[mid0:]
        del o[mid0:]
        gapn = len(body) // (NR - D)
        j = D
        for n, ln in enumerate(body):
            if n % gapn == 0 and j < NR:
                setoff(j, sBASE)
                e(f"    s_waitcnt vmcnt({tb - 1})")
                load(j)
                j += 1
            if "v_mfma" in ln and n > nmid:
                item = (int(ln.split("v[")[3].split(":")[0]) - ring) // 4
                assert item <= j - 2 - (tb - 1)
            e(ln)
        assert NR - D <= NR - 2 - (tb - 1)
        e("    s_branch L_v1_in")
    for m in order:
        e(f".p2align {al if m == mid else 6}")
        e(f"L_v{m}:")
        for k in range(NR):
            if tb and m == 1 and k == NR - D:
                e("L_v1_in:")
            pv(k)
            if k == NR - D:
                e(f"    s_add_u32 {sr(sBASE)}, {sr(sBASE)}, 0x10000")
            setoff((k + D) % NR, sBASE)
            e(f"    s_waitcnt vmcnt({RV[m][k & 1] - 1})")
            load((k + D) % NR)
            perms = expand(k + 2, 2 * ((k + 2) % 8))
            if k == 24:
                e("    s_waitcnt lgkmcnt(0)")
            if k == 17:
                e(f"    ds_read_b128 {vr(vX, 4)}, {vr(vLds)} offset:{slot}")
            pstage(k)
            for x in perms:
                e(x)
            control("v", m, k)
            if sa and k == sa - 1 and m == NM - 1:
                e(f"    s_cmp_eq_u32 {sr(sIT)}, {2 * NIT - 2}")
                e("    s_cbranch_scc1 L_soon")
            if sa and k == sa - 1 and m == 1 and bt < 99:
                e(f"    s_sext_i32_i16 {sr(sT0)}, {sr(sBI)}")
                e(f"    s_cmp_ge_i32 {sr(sT0)}, {bt}")
                e(f"    s_cselect_b32 {sr(sT0)}, {sr(sIT)}, 0")
                e(f"    s_cmp_eq_u32 {sr(sT0)}, {2 * NIT - 2}")
                e("    s_cbranch_scc1 L_soon")
            if k == s0 - 1 and not (sa and m == NM - 1 and use < sa):
                e(f"    s_cmp_eq_u32 {sr(sIT)}, {2 * NIT - 2}")
                e("    s_cbranch_scc1 L_last")
        e(f"    s_add_u32 {sr(sIT)}, {sr(sIT)}, 1")
        e(f"    v_add_u32 {vr(vLds)}, {slot}, {vr(vLds)}")
        e(f"    s_branch L_v{m}")

    vW, vS2, vGa, vOa, vG = vXa, vXb, vXT, vFl, vX
    e("    ; ---------------- remaining loads as slots come free, then the last block")
    if sh < 0:
        e(".p2align 6")
    else:
        e(".p2align 10")
        if sh:
            e(f".fill {sh * 8}, 4, 0xbf800000")

    def opening(s):
        for j in range(s + D - NR, s):
            setoff(j, sBASE)
            load(j)
        for k in range(s, NR):
            e(f"    s_waitcnt vmcnt({NR - 1})")
            pv(k)
            setoff(k, sBASE)
            load(k)
            perms = expand(k + 2, 2 * ((k + 2) % 8))
            if k == 24:
                e("    s_waitcnt lgkmcnt(0)")
            if k == 17:
                e(f"    ds_read_b128 {vr(vX, 4)}, {vr(vLds)} offset:{slot}")
            pstage(k)
            for x in perms:
                e(x)

    if sa:
        assert sa < s0
        e("    ; entry from the widest copy, six steps before the end of the block")
        e("L_soon:")
        opening(sa)
        e("    s_branch L_drain")
        if pd >= 0:
            e(".p2align 3")
            if pd:
                e("    s_nop 0")
    e("L_last:")
    opening(s0)
    if sa:
        e("L_drain:")
    e(f"    v_readfirstlane_b32 {sr(sT0)}, {vr(vFl)}")
    e(f"    s_cmp_eq_u32 {sr(sT0)}, 0")
    e("    s_cbranch_scc1 L_flag")
    e("    ; last block: probability operands run up to eight loads ahead; the arrival number is taken on the way")
    e("L_ready:")
    lsum = []
    for c in ("quad_perm:[2,3,0,1]", "row_ror:4", "row_ror:8"):
        lsum.append([f"    v_add_f32_dpp {vr(vL)}, {vr(vL)}, {vr(vL)} {c} {ALL}"])
    for sw in ("v_permlane16_swap_b32", "v_permlane32_swap_b32"):
        lsum.append([f"    v_mov_b32 {vr(vT + 1)}, {vr(vL)}"])
        lsum.append([f"    {sw} {vr(vL)}, {vr(vT + 1)}", f"    v_add_f32 {vr(vL)}, {vr(vL)}, {vr(vT + 1)}"])
    lsum.append([f"    v_min_u32 {vr(vMc)}, -2, {vr(vMc)}", f"    v_min_u32 {vr(vL)}, -2, {vr(vL)}"])
    setup = [
        [f"    v_lshrrev_b32 {vr(vT + 2)}, 5, {vr(vLane)}", f"    v_and_b32 {vr(vT + 3)}, 15, {vr(vLane)}"],
        [f"    v_mul_u32_u24 {vr(vGa)}, {SLOT}, {vr(vT + 3)}", f"    v_lshl_add_u32 {vr(vGa)}, {vr(vT + 2)}, 3, {vr(vGa)}"],
        [f"    v_lshlrev_b32 {vr(vMax)}, 8, {vr(vT + 2)}", f"    v_lshl_add_u32 {vr(vMax)}, {vr(vT + 3)}, 4, {vr(vMax)}"],
        [f"    v_bfe_u32 {vr(vT + 3)}, {vr(vLane)}, 4, 1", f"    v_lshl_add_u32 {vr(vOa)}, {vr(vT + 3)}, 3, {vr(vMax)}"],
        [f"    s_lshl_b32 {sr(sT0)}, {sr(sHEAD)}, 9", f"    s_add_u32 {sr(sS)}, {sr(sOUT)}, {sr(sT0)}",
         f"    s_addc_u32 {sr(sS + 1)}, {sr(sOUT + 1)}, 0", f"    s_movk_i32 {sr(sS + 2)}, 512"],
        [f"    v_lshlrev_b32 {vr(vT + 2)}, 3, {vr(vLane)}"],
    ]
    if fa:
        setup[4].pop()
    late = []
    if gm & 2:
        late = [f"    v_lshrrev_b32 {vr(vT)}, 5, {vr(vLane)}", f"    v_and_b32 {vr(vT + 1)}, 15, {vr(vLane)}",
                f"    v_lshlrev_b32 {vr(vOa)}, 8, {vr(vT)}", f"    v_lshl_add_u32 {vr(vOa)}, {vr(vT + 1)}, 4, {vr(vOa)}",
                f"    v_bfe_u32 {vr(vT)}, {vr(vLane)}, 4, 1", f"    v_lshl_add_u32 {vr(vOa)}, {vr(vT)}, 3, {vr(vOa)}"] + setup[4]
        del setup[2:5]
        if gm & 4:
            late[2:2] = [f"    v_mul_u32_u24 {vr(vGa)}, {SLOT}, {vr(vT + 1)}", f"    v_lshl_add_u32 {vr(vGa)}, {vr(vT)}, 3, {vr(vGa)}"]
            late += [f"    s_movk_i32 {sr(sTAB + n)}, {3 * n * SLOT}" for n in range(1, 6)]
            del setup[0:2]
    if ahead:
        sets = [vD, vD + 4, vD + 8, vD + 12, vQ, vQ + 4, vKT, vVT]
        pregs = [vP, vXa, vXb, vPg]
        side = []
        for g in (1, 2, 3):
            side.append([f"    v_fma_f32 {vr(vE)}, {vr(vX + g)}, {sr(sC)}, -{vr(vMc)}"])
            side.append([f"    v_exp_f32 {vr(vE)}, {vr(vE)}"])
            side.append([f"    v_mov_b32_dpp {vr(vT)}, {vr(vE)} quad_perm:[1,0,3,2] {ALL}", f"    v_add_f32 {vr(vL)}, {vr(vL)}, {vr(vE)}"])
            side.append([f"    v_cvt_pk_bf16_f32 {vr(pregs[g])}, {vr(vE)}, {vr(vT)}"])
        side += [a + (setup.pop(0) if setup else []) for a in lsum]
        lsum = []
        nxt = 2
        for k in range(NR):
            e(f"    s_waitcnt vmcnt({NR - 1 - k})")
            e(f"    v_mfma_f32_16x16x32_bf16 {vr(vAcc, 4)}, {vr(sets[k % 8], 4)}, {rg(k)}, {vr(vAcc, 4)}")
            if k == ea:
                e(f"    s_mov_b32 {sr(sAT)}, 1")
                e(f"    s_atomic_add {sr(sAT)}, {sr(sW, 2)}, {16 * SLOT} glc")
            firstx = True
            while nxt < NR and (nxt - 2) * ahead // 29 <= k:
                assert nxt - 8 <= k <= nxt - 2 and k >= 4 * (nxt // 8)
                e(f"    v_mov_b32_dpp {vr(vBc)}, {vr(pregs[nxt // 8])} row_newbcast:{2 * (nxt % 8)} {ALL}")
                if firstx and side:
                    for x in side.pop(0):
                        e(x)
                firstx = False
                for t in range(4):
                    e(f"    v_perm_b32 {vr(sets[nxt % 8] + t)}, {vr(vBc)}, {vr(vBc)}, {vr(vSel + t)}")
                nxt += 1
        assert nxt == NR and not side
    for k in range(0 if ahead else NR):
        e(f"    s_waitcnt vmcnt({NR - 1 - k})")
        pv(k)
        if k == ea:
            e(f"    s_mov_b32 {sr(sAT)}, 1")
            e(f"    s_atomic_add {sr(sAT)}, {sr(sW, 2)}, {16 * SLOT} glc")
        perms = expand(k + 2, 2 * ((k + 2) % 8)) if k + 2 < NR else []
        if k < 24:
            pstage(k)
        if setup:
            for x in setup.pop(0):
                e(x)
        if k >= 20 and lsum:
            for x in lsum.pop(0):
                e(x)
        for x in perms:
            e(x)
    assert not lsum and not setup
    if stamps:
        e(f"    s_memrealtime {sr(sTS + 2, 2)}")
    mark("end")
    if ampfrom == 100:
        e(f"    s_memrealtime {sr(sTS + 4, 2)}")
    e("    s_waitcnt lgkmcnt(0)")
    e(f"    s_cmp_eq_u32 {sr(sAT)}, 15")
    def clampacc():
        for j in range(4):
            e(f"    v_min_u32 {vr(vAcc + j)}, -2, {vr(vAcc + j)}")

    if not em and not pf:
        e("    s_nop 5")
        clampacc()

    def put(pol):
        e(f"    buffer_store_dwordx4 {vr(vAcc, 4)}, {vr(vLin)}, {sr(sW, 4)}, {sr(sREC)} offen{pol}")
        e("    s_mov_b64 exec, 0xffff")
        e(f"    buffer_store_dwordx2 {vr(vML, 2)}, {vr(vT + 2)}, {sr(sW, 4)}, {sr(sREC)} offen offset:1024{pol}")

    def early_put(pol):
        e("    s_mov_b64 exec, 0xffff")
        e(f"    buffer_store_dwordx2 {vr(vML, 2)}, {vr(vT + 2)}, {sr(sW, 4)}, {sr(sREC)} offen offset:1024{pol}")
        e("    s_mov_b64 exec, -1")
        e("    s_nop 1")
        clampacc()
        e(f"    buffer_store_dwordx4 {vr(vAcc, 4)}, {vr(vLin)}, {sr(sW, 4)}, {sr(sREC)} offen{pol}")

    def leave():
        if stamps or amp and ampwg != -3:
            e("    s_mov_b64 exec, -1")
            e("    s_branch L_fin")
        else:
            e("    s_endpgm")

    if near:
        e("    s_cbranch_scc1 L_merge")
        if em:
            e("    s_nop 4")
            clampacc()
        if pf:
            early_put(" sc1")
        else:
            put(" sc1")
        leave()
        if pm >= 0:
            e(".p2align 3")
            if pm:
                e("    s_nop 0")
        e("L_merge:")
    else:
        e("    s_cbranch_scc0 L_put")
    e("    ; last arrival of the head: its own record is read back by this wave only")

    def gather(z):
        e(f"    buffer_load_dwordx2 {vr(vG + 2 * z, 2)}, {vr(vGa)}, {sr(sW, 4)}, 0 offen offset:1024 sc1")

    if em:
        e("    s_mov_b64 exec, 0xffff")
        e(f"    buffer_store_dwordx2 {vr(vML, 2)}, {vr(vT + 2)}, {sr(sW, 4)}, {sr(sREC)} offen offset:1024")
        e("    s_mov_b64 exec, -1")
        if em == 1:
            gather(0)
        e(f"    s_nop {0 if em == 1 else 1}")
        clampacc()
        e(f"    buffer_store_dwordx4 {vr(vAcc, 4)}, {vr(vLin)}, {sr(sW, 4)}, {sr(sREC)} offen")
    else:
        if pf:
            early_put("")
        else:
            put("")
            e("    s_mov_b64 exec, -1")
        for _ in range(dly):
            e("    s_nop 7")
            e("    s_nop 7")
        if dbl != 1:
            for x in late:
                e(x)
            late = []
        if ack >= 0:
            e(f"    s_waitcnt vmcnt({ack})")
    e("    ; merge the 16 records once none holds the fill pattern any more")

    def fetch(z):
        if em == 1:
            e("L_data:")
        else:
            gather(z)
        for i in range(16):
            so = sr(sO)
            if gm & 4:
                so = sr(sTAB + i // 3) if i >= 3 else "0"
            elif i % 3 == 0:
                e(f"    s_movk_i32 {sr(sO)}, {i * SLOT}")
            e(f"    buffer_load_dwordx4 {rg(16 * z + i)}, {vr(vLin)}, {sr(sW, 4)}, {so} offen offset:{(i % 3) * SLOT} sc1")

    def merge(z, younger, again):
        g = vG + 2 * z
        e(f"    s_waitcnt vmcnt({16 + younger})")
        e(f"    v_max_f32_dpp {vr(vMax)}, {vr(g)}, {vr(g)} row_ror:1 {ALL}")
        e(f"    v_max_u32 {vr(vT)}, {vr(g)}, {vr(g + 1)}")
        e(f"    v_cmp_eq_u32 vcc, -1, {vr(vT)}")
        e(f"    v_max_f32_dpp {vr(vMax)}, {vr(vMax)}, {vr(vMax)} row_ror:2 {ALL}")
        e(f"    s_cbranch_vccnz {again}")
        e("    s_nop 0")
        e(f"    v_max_f32_dpp {vr(vMax)}, {vr(vMax)}, {vr(vMax)} row_ror:4 {ALL}")
        e("    s_nop 1")
        e(f"    v_max_f32_dpp {vr(vMax)}, {vr(vMax)}, {vr(vMax)} row_ror:8 {ALL}")
        e(f"    v_sub_f32 {vr(vW)}, {vr(g)}, {vr(vMax)}")
        e(f"    v_exp_f32 {vr(vW)}, {vr(vW)}")
        e("    s_nop 0")
        e(f"    v_mul_f32 {vr(vS2)}, {vr(g + 1)}, {vr(vW)}")
        extra = [f"    v_add_f32_dpp {vr(vS2)}, {vr(vS2)}, {vr(vS2)} row_ror:{n} {ALL}" for n in (1, 2, 4, 8)]
        if not fa:
            extra.append(f"    v_rcp_f32 {vr(vS2)}, {vr(vS2)}")
        for i in range(16):
            if fa:
                if i in (0, fa, 2 * fa):
                    e(f"    s_waitcnt vmcnt({(16 - fa - i if i < 2 * fa else 0) + younger})")
                if i == fa:
                    e(f"    v_rcp_f32 {vr(vS2)}, {vr(vS2)}")
                if i == 2 * fa:
                    e(f"    s_movk_i32 {sr(sS + 2)}, 512")
            elif i % wq == 0:
                e(f"    s_waitcnt vmcnt({16 - wq - i + younger})")
            op = "v_mul_f32_dpp" if i == 0 else "v_fmac_f32_dpp"
            for j in range(4):
                e(f"    {op} {vr(vAcc + j)}, {vr(vW)}, {vr(ring + 64 * z + 4 * i + j)} row_newbcast:{i} {ALL}")
            if extra:
                e(extra.pop(0))
        e(f"    v_cmp_u_f32 vcc, {vr(vAcc)}, {vr(vAcc + 1)}")
        e(f"    v_cmp_u_f32 {sr(sAH, 2)}, {vr(vAcc + 2)}, {vr(vAcc + 3)}")
        for j in range(4):
            e(f"    v_mul_f32 {vr(vAcc + j)}, {vr(vAcc + j)}, {vr(vS2)}")
        e(f"    s_or_b64 vcc, vcc, {sr(sAH, 2)}")
        e(f"    v_cvt_pk_bf16_f32 {vr(vML)}, {vr(vAcc)}, {vr(vAcc + 1)}")
        e(f"    v_cvt_pk_bf16_f32 {vr(vML + 1)}, {vr(vAcc + 2)}, {vr(vAcc + 3)}")
        e(f"    s_cbranch_scc1 L_nan{z}")

    def nancheck(z, again):
        e(f"L_nan{z}:")
        r0 = ring + 64 * z
        e(f"    v_max_u32 {vr(vT)}, {vr(r0)}, {vr(r0 + 1)}")
        for r in range(2, 64, 2):
            e(f"    v_max3_u32 {vr(vT)}, {vr(vT)}, {vr(r0 + r)}, {vr(r0 + r + 1)}")
        e(f"    v_cmp_eq_u32 vcc, -1, {vr(vT)}")
        e(f"    s_cbranch_vccnz {again}")
        e("    s_branch L_out")

    if dbl:
        fetch(0)
        for _ in range(gap):
            e("    s_nop 15")
        if gm & 1:
            e("    s_waitcnt vmcnt(17)")
        for x in late:
            e(x)
        e("L_get1:")
        fetch(1)
        merge(0, 17, "L_get0")
    else:
        if em != 1:
            e("L_get0:")
        fetch(0)
        merge(0, 0, "L_get0")
    e("L_out:")
    e(f"    buffer_store_dwordx2 {vr(vML, 2)}, {vr(vOa)}, {sr(sS, 4)}, 0 offen")
    if amp:
        e("L_fin:")
        e("    s_waitcnt vmcnt(0)")
        mark("fin")
        if ampwg >= 0:
            e(f"    s_cmp_lg_u32 s2, {ampwg}")
            e("    s_cbranch_scc1 L_end")
        e("    s_waitcnt lgkmcnt(0)")
        e(f"    s_sub_u32 {sr(sT0)}, {sr(sTS + 2)}, {sr(sTS + 4 if ampfrom >= 0 else sTS)}")
        e(f"    s_sub_i32 {sr(sT0)}, {sr(sT0)}, {ampbase}")
        e(f"    s_max_i32 {sr(sT0)}, {sr(sT0)}, 0")
        e(f"    s_min_i32 {sr(sT0)}, {sr(sT0)}, 1000")
        if ampwg <= -2:
            e(f"    s_add_u32 {sr(sT0)}, {sr(sT0)}, 0x400000")
            e(f"    s_mov_b32 {sr(sT1)}, {sr(sT0)}")
            e(f"    s_atomic_add {sr(sT1)}, {sr(sDBG, 2)}, 64 glc")
            e("    s_waitcnt lgkmcnt(0)")
            e(f"    s_add_u32 {sr(sT0)}, {sr(sT0)}, {sr(sT1)}")
            e(f"    s_lshr_b32 {sr(sT1)}, {sr(sT0)}, 22")
            e(f"    s_cmp_lg_u32 {sr(sT1)}, {256 if ampwg == -2 else 16}")
            e("    s_cbranch_scc1 L_end")
            e(f"    s_and_b32 {sr(sT0)}, {sr(sT0)}, 0x3fffff")
        e(f"    s_mul_i32 {sr(sT0)}, {sr(sT0)}, {ampx}")
        if ampwg <= -2:
            e(f"    s_lshr_b32 {sr(sT0)}, {sr(sT0)}, {8 if ampwg == -2 else 4}")
        e(f"    s_add_u32 {sr(sTS)}, {sr(sTS)}, {sr(sT0)}")
        e(f"    s_add_u32 {sr(sTS)}, {sr(sTS)}, 10000")
        e("L_spin:")
        e(f"    s_memrealtime {sr(sTS + 2, 2)}")
        e("    s_waitcnt lgkmcnt(0)")
        e(f"    s_sub_u32 {sr(sT0)}, {sr(sTS + 2)}, {sr(sTS)}")
        e(f"    s_cmp_lt_i32 {sr(sT0)}, 0")
        e("    s_cbranch_scc1 L_spin")
    if stamps:
        e("L_fin:")
        e("    s_waitcnt vmcnt(0)")
        e(f"    s_memrealtime {sr(sTS + 4, 2)}")
        e(f"    s_lshl_b32 {sr(sT0)}, s2, 5")
        e(f"    s_add_u32 {sr(sW)}, {sr(sWS)}, 0x100000")
        e(f"    s_addc_u32 {sr(sW + 1)}, {sr(sWS + 1)}, 0")
        e(f"    s_mov_b32 {sr(sW + 2)}, 0x100000")
        e("    s_waitcnt lgkmcnt(0)")
        e(f"    s_mov_b32 {sr(sTS + 6)}, {sr(sACC)}")
        e(f"    s_mov_b32 {sr(sTS + 7)}, {sr(sACC)}")
        if trace:
            e(f"    s_lshl_b32 {sr(sT1)}, s2, 9")
            e(f"    s_add_u32 {sr(sT1)}, {sr(sT1)}, 0x40000")
            e(f"    v_lshlrev_b32 {vr(vT)}, 2, {vr(vLane)}")
            e(f"    buffer_store_dword {vr(vTr)}, {vr(vT)}, {sr(sW, 4)}, {sr(sT1)} offen")
        for k in range(8):
            e(f"    v_mov_b32 {vr(ring + k)}, {sr(sTS + k)}")
        e("    s_mov_b64 exec, 1")
        e(f"    buffer_store_dwordx4 {vr(ring, 4)}, off, {sr(sW, 4)}, {sr(sT0)}")
        e(f"    buffer_store_dwordx4 {vr(ring + 4, 4)}, off, {sr(sW, 4)}, {sr(sT0)} offset:16")
    e("L_end:")
    e("    s_endpgm")

    if dbl:
        e(".p2align 3")
        if pq:
            e("    s_nop 0")
        e("L_get0:")
        fetch(0)
        merge(1, 17, "L_get1")
        e("    s_branch L_out")
    if em == 1:
        e("L_get0:")
        gather(0)
        e("    s_branch L_data")
    if not near:
        e("L_put:")
        put(" sc1")
        leave()
    e("    ; a NaN came out: fetch again if a record still held the fill pattern, otherwise it is the result")
    nancheck(0, "L_get0")
    if dbl:
        nancheck(1, "L_get1")
    e("    ; the counters were not yet reported as cleared when sampled: poll the flag")
    e("L_flag:")
    e(f"    buffer_load_dword {vr(vFl)}, off, {sr(sY, 4)}, 0 sc1")
    e("    s_waitcnt vmcnt(0)")
    e(f"    v_readfirstlane_b32 {sr(sT0)}, {vr(vFl)}")
    e(f"    s_cmp_eq_u32 {sr(sT0)}, 0")
    e("    s_cbranch_scc1 L_flag")
    e("    s_branch L_ready")
    e("    ; workgroup 256 clears the 16 + 32 counters and then raises the flag")
    e("L_extra:")
    e(f"    s_cmp_lg_u32 s2, {NWG}")
    e("    s_cbranch_scc1 L_end")
    e(f"    v_mul_u32_u24 {vr(vT)}, {HW}, {vr(vLane)}")
    e(f"    v_mov_b32 {vr(vT + 1)}, 0")
    e(f"    v_mov_b32 {vr(vT + 2)}, 1")
    e(f"    s_mov_b32 {sr(sW + 2)}, {48 * HW}")
    e(f"    s_mov_b32 {sr(sW + 3)}, 0x20000")
    e(f"    s_mov_b32 {sr(sY + 2)}, 4")
    e(f"    s_mov_b32 {sr(sY + 3)}, 0x20000")
    e(f"    s_mov_b32 {sr(sT0)}, {16 * SLOT}")
    e("    s_waitcnt lgkmcnt(0)")
    e(f"    s_mov_b64 {sr(sW, 2)}, {sr(sWS, 2)}")
    e(f"    s_mov_b64 {sr(sY, 2)}, {sr(sDBG, 2)}")
    e(f"    buffer_store_dword {vr(vT + 1)}, {vr(vT)}, {sr(sW, 4)}, {sr(sT0)} offen sc1")
    e("    s_mov_b64 exec, 1")
    e("    s_waitcnt vmcnt(0)")
    e(f"    buffer_store_dword {vr(vT + 2)}, off, {sr(sY, 4)}, 0 sc1")
    e("    s_endpgm")
    for ph in ("k", "v"):
        e(f"L_{ph}_pick:")
        for m in order[:-1]:
            e(f"    s_cmp_eq_u32 {sr(sNM)}, {m + 3 * bool(slim)}")
            e(f"    s_cbranch_scc1 L_{ph}{m}_u")
        e(f"    s_branch L_{ph}{order[-1]}_u")
    e("    ; three consecutive iterations of the round's workgroups: sample the flag, take the arrival number,")
    e("    ; publish the group's bias, which is added to (peers ahead - peers behind) when a copy is picked")
    for ph in ("k", "v"):
        for m in order:
            e(f"L_{ph}{m}_round:")
            if slim:
                e(f"    s_mov_b32 {sr(sT0)}, {sr(sST)}")
                e(f"    s_add_u32 {sr(sST)}, {sr(sST)}, 1")
                e(f"    s_add_u32 {sr(sTK)}, {sr(sTK)}, 1")
            if esc:
                e(f"    s_cmp_eq_u32 {sr(sT0)}, 3")
                e(f"    s_cbranch_scc1 L_{ph}{m}_far")
            e(f"    s_cmp_eq_u32 {sr(sT0)}, 2")
            e(f"    s_cbranch_scc1 L_{ph}{m}_bias")
            e(f"    s_cmp_eq_u32 {sr(sT0)}, 1")
            e(f"    s_cbranch_scc1 L_{ph}{m}_take")
            e(f"    buffer_load_dword {vr(vFl)}, off, {sr(sY, 4)}, 0 sc1")
            e(f"    s_branch L_{ph}{m}_t")
            e(f"L_{ph}{m}_take:")
            e(f"    v_readfirstlane_b32 {sr(sT0)}, {vr(vFl)}")
            e(f"    s_cmp_eq_u32 {sr(sT0)}, 0")
            e(f"    s_cselect_b32 {sr(sTK)}, 0x7fff, {sr(sTK)}")
            e(f"    s_cbranch_scc1 L_{ph}{m}_t")
            e(f"    s_mov_b32 {sr(sAT)}, 1")
            e(f"    s_atomic_add {sr(sAT)}, {sr(sWS, 2)}, {sr(sTB)} glc")
            e(f"    s_branch L_{ph}{m}_t")
            e(f"L_{ph}{m}_bias:")
            if slim:
                e(f"    s_movk_i32 {sr(sTK)}, 0x7fff")
            e("    s_waitcnt lgkmcnt(0)")
            e(f"    s_lshl1_add_u32 {sr(sT0)}, {sr(sAT)}, -7")
            if esc:
                e(f"    s_mov_b32 {sr(sAT)}, 0")
                e(f"    s_atomic_add {sr(sAT)}, {sr(sWS, 2)}, {sr(sTB)} glc")
            e(f"    s_mul_i32 {sr(sT0)}, {sr(sT0)}, {kp}")
            if off:
                e(f"    s_add_i32 {sr(sT0)}, {sr(sT0)}, {off}")
            if dn != 1:
                e(f"    s_mul_i32 {sr(sT1)}, {sr(sT0)}, {dn}")
                if dh:
                    e(f"    s_ashr_i32 {sr(sT1)}, {sr(sT1)}, 1")
                e(f"    s_min_i32 {sr(sT0)}, {sr(sT0)}, {sr(sT1)}")
            if mem:
                e(f"    s_sext_i32_i16 {sr(sT1)}, {sr(sBI)}")
                if memp:
                    e(f"    s_max_i32 {sr(sAT)}, {sr(sT1)}, 0")
                    e(f"    s_min_i32 {sr(sAT)}, {sr(sAT)}, {pmax}")
                    e(f"    s_mul_i32 {sr(sAT)}, {sr(sAT)}, {memp}")
                e(f"    s_min_i32 {sr(sT1)}, {sr(sT1)}, 0")
                e(f"    s_max_i32 {sr(sT1)}, {sr(sT1)}, -16")
                e(f"    s_mul_i32 {sr(sT1)}, {sr(sT1)}, {mem}")
                e(f"    s_cmp_lt_i32 {sr(sT0)}, 0")
                e(f"    s_cselect_b32 {sr(sT1)}, {sr(sT1)}, {sr(sAT) if memp else 0}")
                e(f"    s_add_i32 {sr(sT0)}, {sr(sT0)}, {sr(sT1)}")
            e(f"    s_add_i32 {sr(sT0)}, {sr(sT0)}, 2")
            e(f"    s_ashr_i32 {sr(sT0)}, {sr(sT0)}, 2")
            e(f"    v_mov_b32 {vr(vT + 2)}, {sr(sT0)}")
            if xl:
                e(f"    v_lshlrev_b32 {vr(vT + 3)}, 7, {vr(vLane)}")
            e(f"    buffer_store_short {vr(vT + 2)}, {vr(vT + 3 if xl else vPo)}, {sr(sPB, 4)}, 0 offen")
            e(f"    s_branch L_{ph}{m}_t")
            if esc:
                e(f"L_{ph}{m}_far:")
                e("    s_waitcnt lgkmcnt(0)")
                e(f"    s_cmp_ge_u32 {sr(sAT)}, 8")
                e(f"    s_cbranch_scc1 L_{ph}{m}_t")
                e(f"    v_mov_b32 {vr(vT + 2)}, {-esc}")
                e(f"    buffer_store_short {vr(vT + 2)}, {vr(vPo)}, {sr(sPB, 4)}, 0 offen")
                e(f"    s_branch L_{ph}{m}_t")
    e("L_code_end:")
    e('.section .rodata,"a"')
    e(".p2align 6")
    e(f".amdhsa_kernel {NAME}_kernel")
    e(f"  .amdhsa_next_free_vgpr {nv}")
    e(f"  .amdhsa_next_free_sgpr {100 if stamps or mini or table or amp else 78}")
    e(f"  .amdhsa_accum_offset {(nv + 3) // 4 * 4}")
    e("  .amdhsa_group_segment_fixed_size 0")
    e("  .amdhsa_kernarg_size 72")
    e("  .amdhsa_user_sgpr_count 2")
    e("  .amdhsa_user_sgpr_kernarg_segment_ptr 1")
    e("  .amdhsa_system_sgpr_workgroup_id_x 1")
    e("  .amdhsa_float_denorm_mode_32 3")
    e(".end_amdhsa_kernel")
    return "\n".join(o) + "\n"


if __name__ == "__main__":
    for spec in sys.argv[1:]:
        name, _, kv = spec.partition(":")
        kw = {}
        for p in filter(None, kv.split(",")):
            k, v = p.split("=")
            kw[k] = v.replace("+", " ") if k in ("RK", "RV", "cs", "amp", "fl", "th") else int(v)
        path = name if name.endswith(".s") else f"var/{name}.s"
        open(path, "w").write(gen(**kw))
```

```python
import struct
import sys

NAME = "standalone__tree_speculative_verify_tree_attention_over_candidate_token_tree__decode"
MiB = 1 << 20
NWG = 256
NR = 32
NIT = 32
SLOT = 1152
HW = 16 * SLOT + 2304
NEG_INF = "0xff800000"
ALL = "row_mask:0xf bank_mask:0xf"

HEADER = """\
;
; Workgroup w < 256 (one wave) owns 4096 keys of kv head w>>4 and serves both of its query heads.
;   phase K : stream the keys, scores by MFMA, raw scores kept in LDS, exact chunk maximum
;   phase V : stream the values, p = exp2(c*s - c*max) as bf16, accumulate by MFMA
;   combine : every workgroup leaves (acc, max, sum) in the workspace; the one that takes the last arrival
;             number of its head merges the 16 records, normalises and writes the output
; The loops exist in five copies that differ only in how many loads stay in flight (HBM runs best just
; below queue saturation).  Progress words and sparse arrival numbers pick the copy so that all workgroups
; finish together.  These words are hints only: the keys each workgroup handles, the order of every sum,
; and therefore the result do not depend on them or on where a workgroup is placed.
; Hand-off: a record is first filled with all-ones words by its owner, which takes its arrival number later;
; records are written and read with sc1, and the merging wave reloads until no all-ones word is left.
; Workgroup 256 clears the counters in the workspace and then raises a flag in d_debug; no counter is used
; before that flag has been seen.  All 257 single-wave workgroups are co-resident (four fit on one CU)."""


def f32(x):
    return "0x%08x" % struct.unpack("<I", struct.pack("<f", x))[0]


class Regs:
    def __init__(self, start):
        self.n = start

    def take(self, cnt, align=1):
        self.n = (self.n + align - 1) // align * align
        r = self.n
        self.n += cnt
        return r


def vr(a, n=1):
    return f"v{a}" if n == 1 else f"v[{a}:{a + n - 1}]"


def sr(a, n=1):
    return f"s{a}" if n == 1 else f"s[{a}:{a + n - 1}]"


def gen(RK="20.21.22.23.25", RV=None, rd=16, use=14, lo=6, hi=3, T=4, t0=8, kp=2, dn=1, off=0, rot=5,
        cs="2.3.1.3.4.6.7", ea=8, s0=32, early=1, stamps=0, mini=0, trace=0, table=0, amp="", ampwg=77, ampbase=0, ampx=20, ampfrom=-1, dw=7, first=4, near=1, dbl=0, gap=0, gm=6, al=3, esc=0, mem=3, dh=0, ps=0, fl="nt", tb=0, lu=0, ld=0, lmax=6, lmin=0, dm=7, memp=0, pmax=8, sa=26, bt=99, ahead=23, sh=-1, pd=0, pm=1, wq=2, fa=5, em=0, dly=0, ack=-1, pf=0, pq=0, rl=0, rh=1, cft=0, cfd=2, sm=0, d1=8, d2=6, xl=1, pr=0, law=1, th="m4.m1.2.5", zs=0, slim=0, per=3, xs=0, of="", eb=0, pk=0, ke=4, kmax=3, kpk=1, memk=2, offk=None, pkv=0, clr=1, tz=0, wx=0, i2=0):
    def windows(spec):
        return [(int(x.rstrip("h")), int(x.rstrip("h")) + x.endswith("h")) for x in str(spec).split(".")]

    RK = windows(RK)
    RV = windows(RV) if RV else RK
    D = max(max(x) for x in RK + RV) + 1
    NM = len(RK)
    ths = [int(x.replace("m", "-")) for x in th.split(".")] if th else None
    assert NM == 3 or (law and len(ths) == NM - 1)
    mid = sum(t < 0 for t in ths) if ths else 1
    if slim:
        use = rd + D + 1 - NR + (12 + per - 1) // per
    if sm:
        rd, use = sm, 28
        assert rd - d1 >= 0 and rd + d2 < NR and rd < 22
    assert D <= NR and (use - 3 + NR - rd) > D and use >= 3 and 26 <= s0 <= NR and ps < rd and tb < D and use - 3 >= NR - D
    cs = ([int(x) for x in cs.split(".")] + [0] * 7)[:7]
    hsh = [sum(c for i, c in enumerate(cs[:4]) if h >> i & 1) for h in range(16)]
    xsh = [sum(c for i, c in enumerate(cs[4:]) if x >> i & 1) for x in range(8)]
    assert max(hsh) < 16 and max(xsh) < 256
    scale = 128 ** -0.5
    cexp = scale * 1.4426950408889634
    slot = 1024
    t0m = t0 - 1
    if table:
        if table == 1:
            lo, hi, kp, dn, off, T, t0m, mem = (f"s{80 + i}" for i in range(8))
        else:
            lo, hi, off, lu, ld, lmax, lmin, dm = (f"s{80 + i}" for i in range(8))

    o = []
    e = o.append

    sQ, sKp, sVp, sKT, sVT, sMK, sOUT, sDBG, sWS = 4, 6, 8, 10, 12, 14, 16, 18, 20
    sS, sW, sY, sPR, sPW, sPB = 24, 28, 32, 36, 40, 44
    sHEAD, sCH, sC, sIT, sT0, sT1, sBASE, sO, sB0, sREG, sVB = 48, 49, 50, 51, 52, 53, 54, 55, 56, 57, 58
    sAH, sBH, sBI, sBL, sTK, sTB, sAT, sNM, sREC = 60, 61, 62, 63, 64, 65, 66, 67, 68
    sLV = 69
    sOWN, sST = 69, 22
    sT2, sA2 = 23, 22
    sPN, sPT, sHO = 22, 23, 3
    sTAB = 70
    sTS, sTR, sACC = 88, 96, 98

    R = Regs(1)
    vOff = R.take(1)
    vLin = R.take(1)
    vLds = R.take(1)
    vML = R.take(2, 2)
    vMc, vL = vML, vML + 1
    vT = R.take(4, 2)
    vMax = R.take(1)
    vXa = R.take(1)
    vXb = R.take(1)
    vXT = R.take(1)
    vE = R.take(1)
    vP = R.take(1)
    vBc = R.take(1)
    vPo = R.take(1)
    vPg = R.take(1)
    vPs = R.take(1)
    vFl = R.take(1)
    vTr = R.take(1)
    vX = R.take(4, 4)
    vAcc = R.take(4, 4)
    vSel = R.take(4, 4)
    vQ = R.take(8, 4)
    vD = R.take(16, 4)
    vB = vD
    vVT = R.take(4, 4)
    vKT = R.take(4, 4)
    ring = R.take(4 * NR, 4)
    nv = R.n
    vLane = 0

    def rg(k):
        return vr(ring + 4 * k, 4)

    def load(k):
        e(f"    buffer_load_dwordx4 {rg(k)}, {vr(vOff)}, {sr(sS, 4)}, {sr(sO)} offen offset:{(k % 4) * 1024} {fl}")

    def setoff(k, base):
        if k % 4 == 0:
            e(f"    s_add_u32 {sr(sO)}, {sr(base)}, {sr(sTAB + k // 4)}")
            e(f"    s_and_b32 {sr(sO)}, {sr(sO)}, {2 * MiB - 1:#x}")

    def zero_lines():
        if xs:
            e(f"    s_and_b32 {sr(sPB)}, s2, 7")
            e(f"    s_mul_i32 {sr(sPB)}, {sr(sPB)}, {xs}")
            e(f"    s_add_u32 {sr(sPB)}, {sr(sPB)}, {48 * HW}")
            e(f"    s_add_u32 {sr(sPB)}, {sr(sWS)}, {sr(sPB)}")
        else:
            e(f"    s_add_u32 {sr(sPB)}, {sr(sWS)}, {48 * HW}")
        e(f"    s_addc_u32 {sr(sPB + 1)}, {sr(sWS + 1)}, 0")
        e(f"    s_movk_i32 {sr(sPB + 2)}, 256")
        e(f"    s_mov_b32 {sr(sPB + 3)}, 0x20000")
        e(f"    v_lshlrev_b32 {vr(vPo)}, 2, {vr(vLane)}")
        e(f"    v_mov_b32 {vr(vPg)}, 0")
        e(f"    buffer_store_dword {vr(vPg)}, {vr(vPo)}, {sr(sPB, 4)}, 0 offen")

    def tab(u):
        e(f"    s_add_u32 {sr(sT0)}, {sr(sTAB)}, {u * 4096:#x}")
        e(f"    s_and_b32 {sr(sT1)}, {sr(sT0)}, 0x8000")
        e(f"    s_add_u32 {sr(sTAB + u)}, {sr(sT0)}, {sr(sT1)}")

    e(HEADER)
    e(f"; @launch grid=({NWG + 1},1,1) block=(64,1,1) lds={NIT * slot}")
    e('.amdgcn_target "amdgcn-amd-amdhsa--gfx950"')
    e(".text")
    e(f".globl {NAME}_kernel")
    e(".p2align 8")
    e(f".type {NAME}_kernel,@function")
    e(f"{NAME}_kernel:")
    e("    s_load_dwordx16 s[4:19], s[0:1], 0")
    e("    s_load_dwordx2 s[20:21], s[0:1], 64")
    if stamps or mini or amp:
        e(f"    s_memrealtime {sr(sTS, 2)}")

    def mark(name):
        if amp == name:
            e(f"    s_memrealtime {sr(sTS + 2, 2)}")
    e(f"    s_cmp_ge_u32 s2, {NWG}")
    e("    s_cbranch_scc1 L_extra")
    if dw:
        e("    ; each workgroup reads a few lines of this code as data, so that first executions find it in L2")
        e(f"    s_getpc_b64 {sr(sAH, 2)}")
        e("L_pc0:")
        e(f"    s_lshr_b32 {sr(sT0)}, s2, 3")
        e(f"    s_mul_i32 {sr(sT0)}, {sr(sT0)}, {dw * 128}")
        e(f"    v_lshl_add_u32 {vr(vML)}, {vr(vLane)}, 7, {sr(sT0)}")
        e(f"    v_min_u32 {vr(vML)}, L_code_end-L_pc0-4, {vr(vML)}")
        e(f"    v_mov_b32 {vr(vML + 1)}, 0")
        e(f"    v_lshl_add_u64 {vr(vML, 2)}, {vr(vML, 2)}, 0, {sr(sAH, 2)}")
        e(f"    s_mov_b64 exec, {(1 << dw) - 1}")
        e(f"    global_load_dword {vr(vBc)}, {vr(vML, 2)}, off")
        e("    s_mov_b64 exec, -1")
    e("    ; workgroups w and w^8 share a 2 MiB region in alternating 32 KiB blocks; each pair starts its walk")
    e("    ; a few 4 KiB steps into the region and wraps at its end")
    e(f"    s_lshr_b32 {sr(sHEAD)}, s2, 4")
    e(f"    s_and_b32 {sr(sBL)}, s2, 7")
    hw = sum(v << (4 * h) for h, v in enumerate(hsh))
    e(f"    s_mov_b32 {sr(sT0)}, {hw & 0xffffffff:#x}")
    e(f"    s_mov_b32 {sr(sT1)}, {hw >> 32:#x}")
    e(f"    s_lshl_b32 {sr(sO)}, {sr(sHEAD)}, 2")
    e(f"    s_lshr_b64 {sr(sT0, 2)}, {sr(sT0, 2)}, {sr(sO)}")
    e(f"    s_and_b32 {sr(sTAB)}, {sr(sT0)}, 15")
    if any(xsh):
        xw = sum(v << (8 * x) for x, v in enumerate(xsh))
        e(f"    s_mov_b32 {sr(sT0)}, {xw & 0xffffffff:#x}")
        e(f"    s_mov_b32 {sr(sT1)}, {xw >> 32:#x}")
        e(f"    s_lshl_b32 {sr(sO)}, {sr(sBL)}, 3")
        e(f"    s_lshr_b64 {sr(sT0, 2)}, {sr(sT0, 2)}, {sr(sO)}")
        e(f"    s_and_b32 {sr(sT0)}, {sr(sT0)}, 0xff")
        e(f"    s_add_u32 {sr(sTAB)}, {sr(sTAB)}, {sr(sT0)}")
    if table:
        e("    s_waitcnt lgkmcnt(0)")
        e(f"    s_lshl2_add_u32 {sr(sT1)}, s2, 256")
        e(f"    s_load_dword {sr(sTAB)}, {sr(sMK, 2)}, {sr(sT1)}")
        e(f"    s_load_dwordx8 s[80:87], {sr(sMK, 2)}, 2048")
        e("    s_waitcnt lgkmcnt(0)")
    e(f"    s_andn2_b32 {sr(sT0)}, {sr(sTAB)}, 7")
    e(f"    s_and_b32 {sr(sT1)}, s2, 8")
    e(f"    s_lshl1_add_u32 {sr(sB0)}, {sr(sT0)}, {sr(sT1)}")
    e(f"    s_lshl_b32 {sr(sB0)}, {sr(sB0)}, 12")
    e(f"    s_and_b32 {sr(sTAB)}, {sr(sTAB)}, 7")
    e(f"    s_lshl_b32 {sr(sTAB)}, {sr(sTAB)}, 12")
    e(f"    s_lshl3_add_u32 {sr(sREG)}, {sr(sHEAD)}, {sr(sBL)}")
    e(f"    s_lshl_b32 {sr(sREG)}, {sr(sREG)}, 21")
    e(f"    s_mov_b32 {sr(sS + 2)}, {2 * MiB:#x}")
    e(f"    s_mov_b32 {sr(sS + 3)}, 0x20000")
    e(f"    v_and_b32 {vr(vT)}, 3, {vr(vLane)}")
    e(f"    v_bfe_u32 {vr(vT + 1)}, {vr(vLane)}, 2, 2")
    e(f"    v_lshrrev_b32 {vr(vT + 2)}, 4, {vr(vLane)}")
    e(f"    v_lshlrev_b32 {vr(vOff)}, 4, {vr(vT)}")
    e(f"    v_lshl_add_u32 {vr(vOff)}, {vr(vT + 1)}, 8, {vr(vOff)}")
    e(f"    v_lshl_add_u32 {vr(vOff)}, {vr(vT + 2)}, 6, {vr(vOff)}")
    if early:
        for u in range(1, 8):
            tab(u)
        e(f"    v_and_b32 {vr(vT)}, 1, {vr(vLane)}")
        e(f"    v_lshlrev_b32 {vr(vT)}, 8, {vr(vT)}")
        e(f"    v_lshl_add_u32 {vr(vT)}, {vr(vT + 1)}, 4, {vr(vT)}")
        e(f"    v_lshl_add_u32 {vr(vT)}, {vr(vT + 2)}, 6, {vr(vT)}")
        e(f"    v_lshlrev_b32 {vr(vLin)}, 4, {vr(vLane)}")
        e(f"    s_lshl_b32 {sr(sT0)}, {sr(sHEAD)}, 9")
        e(f"    s_lshl_b32 {sr(sT1)}, {sr(sHEAD)}, 8")
        e(f"    s_movk_i32 {sr(sPR + 2)}, 512")
        e(f"    s_mov_b32 {sr(sPR + 3)}, 0x20000")
        if tz:
            e(f"    s_and_b32 {sr(sCH)}, s2, 15")
            e(f"    s_cselect_b32 {sr(sY + 2)}, 0, 256")
            e(f"    s_cselect_b32 {sr(sNM)}, 0, 2")
        else:
            e(f"    s_movk_i32 {sr(sY + 2)}, 256")
        e(f"    s_mov_b32 {sr(sY + 3)}, 0x20000")
        setoff(0, sB0)
        e("    s_waitcnt lgkmcnt(0)")
        e(f"    s_add_u32 {sr(sS)}, {sr(sKp)}, {sr(sREG)}")
        e(f"    s_addc_u32 {sr(sS + 1)}, {sr(sKp + 1)}, 0")
        mark("arg")
        for k in range(first):
            if k:
                setoff(k, sB0)
            load(k)
        e(f"    s_add_u32 {sr(sPR)}, {sr(sQ)}, {sr(sT0)}")
        e(f"    s_addc_u32 {sr(sPR + 1)}, {sr(sQ + 1)}, 0")
        e(f"    buffer_load_dwordx4 {vr(vQ, 4)}, {vr(vT)}, {sr(sPR, 4)}, 0 offen")
        e(f"    s_add_u32 {sr(sY)}, {sr(sKT)}, {sr(sT1)}")
        e(f"    s_addc_u32 {sr(sY + 1)}, {sr(sKT + 1)}, 0")
        e(f"    buffer_load_dwordx4 {vr(vKT, 4)}, {vr(vOff)}, {sr(sY, 4)}, 0 offen")
        e(f"    s_add_u32 {sr(sY)}, {sr(sVT)}, {sr(sT1)}")
        e(f"    s_addc_u32 {sr(sY + 1)}, {sr(sVT + 1)}, 0")
        e(f"    buffer_load_dwordx4 {vr(vVT, 4)}, {vr(vLin)}, {sr(sY, 4)}, 0 offen")
        e(f"    s_mov_b64 {sr(sPR, 2)}, {sr(sMK, 2)}")
        e(f"    s_mov_b32 {sr(sPR + 2)}, {sr(sNM) if tz else 2}")
        e(f"    buffer_load_ushort {vr(vXT)}, off, {sr(sPR, 4)}, 0")
        for k in range(first, D):
            if k == zs:
                zero_lines()
            if k:
                setoff(k, sB0)
            load(k)
    else:
        setoff(0, sB0)
        e("    s_waitcnt lgkmcnt(0)")
        e(f"    s_add_u32 {sr(sS)}, {sr(sKp)}, {sr(sREG)}")
        e(f"    s_addc_u32 {sr(sS + 1)}, {sr(sKp + 1)}, 0")
        load(0)
        e(f"    v_and_b32 {vr(vT)}, 1, {vr(vLane)}")
        e(f"    v_lshlrev_b32 {vr(vT)}, 8, {vr(vT)}")
        load(1)
        e(f"    v_lshl_add_u32 {vr(vT)}, {vr(vT + 1)}, 4, {vr(vT)}")
        e(f"    v_lshl_add_u32 {vr(vT)}, {vr(vT + 2)}, 6, {vr(vT)}")
        e(f"    s_lshl_b32 {sr(sT1)}, {sr(sHEAD)}, 9")
        load(2)
        e(f"    s_add_u32 {sr(sPR)}, {sr(sQ)}, {sr(sT1)}")
        e(f"    s_addc_u32 {sr(sPR + 1)}, {sr(sQ + 1)}, 0")
        e(f"    s_movk_i32 {sr(sPR + 2)}, 512")
        load(3)
        e(f"    s_mov_b32 {sr(sPR + 3)}, 0x20000")
        e(f"    s_lshl_b32 {sr(sT1)}, {sr(sHEAD)}, 8")
        e(f"    s_movk_i32 {sr(sY + 2)}, 256")
        e(f"    buffer_load_dwordx4 {vr(vQ, 4)}, {vr(vT)}, {sr(sPR, 4)}, 0 offen")
        e(f"    s_add_u32 {sr(sY)}, {sr(sKT)}, {sr(sT1)}")
        e(f"    s_addc_u32 {sr(sY + 1)}, {sr(sKT + 1)}, 0")
        e(f"    s_mov_b32 {sr(sY + 3)}, 0x20000")
        e(f"    buffer_load_dwordx4 {vr(vKT, 4)}, {vr(vOff)}, {sr(sY, 4)}, 0 offen")
        e(f"    v_lshlrev_b32 {vr(vLin)}, 4, {vr(vLane)}")
        e(f"    s_add_u32 {sr(sY)}, {sr(sVT)}, {sr(sT1)}")
        e(f"    s_addc_u32 {sr(sY + 1)}, {sr(sVT + 1)}, 0")
        e(f"    buffer_load_dwordx4 {vr(vVT, 4)}, {vr(vLin)}, {sr(sY, 4)}, 0 offen")
        e(f"    s_mov_b64 {sr(sPR, 2)}, {sr(sMK, 2)}")
        e(f"    s_mov_b32 {sr(sPR + 2)}, 2")
        e(f"    buffer_load_ushort {vr(vXT)}, off, {sr(sPR, 4)}, 0")
        tab(1)
        for k in range(4, D):
            setoff(k, sB0)
            load(k)
            if k % 4 == 1 and k // 4 < 7:
                tab(k // 4 + 1)
        for u in range((D - 2) // 4 + 2, 8):
            tab(u)
    e("    ; workspace per head: 16 records, then the arrival counter; the own record is filled with an")
    e("    ; all-ones pattern that no stored result can equal")
    e(f"    s_and_b32 {sr(sCH)}, s2, 15")
    e(f"    s_mul_i32 {sr(sREC)}, {sr(sHEAD)}, {HW}")
    e(f"    s_add_u32 {sr(sW)}, {sr(sWS)}, {sr(sREC)}")
    e(f"    s_addc_u32 {sr(sW + 1)}, {sr(sWS + 1)}, 0")
    e(f"    s_mov_b32 {sr(sW + 2)}, {HW}")
    e(f"    s_mov_b32 {sr(sW + 3)}, 0x20000")
    e(f"    s_mul_i32 {sr(sREC)}, {sr(sCH)}, {SLOT}")
    for j in range(4):
        e(f"    v_mov_b32 {vr(vAcc + j)}, -1")

    def clear():
        e(f"    buffer_store_dwordx4 {vr(vAcc, 4)}, {vr(vLin)}, {sr(sW, 4)}, {sr(sREC)} offen sc1")
        e("    s_mov_b64 exec, 0xff")
        e(f"    buffer_store_dwordx4 {vr(vAcc, 4)}, {vr(vLin)}, {sr(sW, 4)}, {sr(sREC)} offen offset:1024 sc1")
        e("    s_mov_b64 exec, -1")

    if clr == 1:
        clear()
    e(f"    s_add_u32 {sr(sVB)}, {sr(sVp)}, {sr(sREG)}")
    e(f"    s_addc_u32 {sr(sVB + 1)}, {sr(sVp + 1)}, 0")
    if mini:
        e("    s_cmp_ge_u32 s2, 8")
        e("    s_cbranch_scc1 L_nomini")
        e(f"    s_lshl_b32 {sr(sT1)}, s2, 8")
        e(f"    s_add_u32 {sr(sT1)}, {sr(sT1)}, 0x100000")
        e(f"    v_mov_b32 {vr(vT + 1)}, {sr(sT1)}")
        e(f"    v_mov_b32 {vr(vT + 2)}, {sr(sTS)}")
        e(f"    v_mov_b32 {vr(vT + 3)}, {sr(sTS + 1)}")
        e("    s_mov_b64 exec, 1")
        e(f"    global_store_dwordx2 {vr(vT + 1)}, {vr(vT + 2, 2)}, {sr(sWS, 2)} sc1")
        e("    s_mov_b64 exec, -1")
        e("L_nomini:")
    e(f"    s_mov_b32 {sr(sBASE)}, {sr(sB0)}")
    e(f"    s_mov_b32 {sr(sC)}, {f32(cexp)}")
    e(f"    s_mov_b32 {sr(sIT)}, 0")
    if lu:
        e(f"    s_mov_b32 {sr(sLV)}, 0")
    if xl:
        e("    ; progress words: two workspace lines, zeroed here by every workgroup before anything reads them; a")
        e("    ; workgroup writes slot w>>4 of line (w>>3)&1 and reads the other line; slot 16+(w&7) = bias of the group")
    else:
        e("    ; progress words: 16-bit slots at d_debug+128, slot w>>3 = own iteration count, slot 32+(w&7) = bias")
    e(f"    s_mov_b64 {sr(sY, 2)}, {sr(sDBG, 2)}")
    e(f"    s_mov_b32 {sr(sY + 2)}, 4")
    if xl:
        XO = 48 * HW
        if not zs:
            zero_lines()
        e(f"    s_and_b32 {sr(sT1)}, s2, 8")
        e(f"    s_lshl_b32 {sr(sT1)}, {sr(sT1)}, 4")
        e(f"    s_lshl1_add_u32 {sr(sT0)}, {sr(sHEAD)}, {sr(sT1)}")
        e(f"    s_add_u32 {sr(sPW)}, {sr(sPB)}, {sr(sT0)}")
        e(f"    s_addc_u32 {sr(sPW + 1)}, {sr(sPB + 1)}, 0")
        e(f"    s_xor_b32 {sr(sT1)}, {sr(sT1)}, 128")
        e(f"    s_add_u32 {sr(sPR)}, {sr(sPB)}, {sr(sT1)}")
        e(f"    s_addc_u32 {sr(sPR + 1)}, {sr(sPB + 1)}, 0")
        e(f"    s_movk_i32 {sr(sPR + 2)}, {80 if slim else 48}")
        e(f"    s_add_u32 {sr(sBL)}, {sr(sBL)}, {32 if slim else 16}")
        e(f"    s_lshl1_add_u32 {sr(sPB)}, {sr(sBL)}, {sr(sPB)}")
        e(f"    s_addc_u32 {sr(sPB + 1)}, {sr(sPB + 1)}, 0")
        e(f"    s_movk_i32 {sr(sPB + 2)}, 130")
        e(f"    s_mov_b32 {sr(sPW + 2)}, 2")
        e(f"    s_lshr_b32 {sr(sT0)}, s2, 3")
        if pr:
            e(f"    s_mov_b32 {sr(sHO)}, 0")
    else:
        e(f"    s_add_u32 {sr(sPR)}, {sr(sDBG)}, 128")
        e(f"    s_addc_u32 {sr(sPR + 1)}, {sr(sDBG + 1)}, 0")
        e(f"    s_movk_i32 {sr(sPR + 2)}, {64 if cft else 80}")
        e(f"    s_lshr_b32 {sr(sT0)}, s2, 3")
        if rl:
            e(f"    s_xor_b32 {sr(sPN)}, {sr(sT0)}, 1")
            e(f"    s_mov_b32 {sr(sHO)}, 0")
        if sm:
            e(f"    s_add_u32 {sr(sPW)}, {sr(sT0)}, {sr(sPR)}")
            e(f"    s_addc_u32 {sr(sPW + 1)}, {sr(sPR + 1)}, 0")
            e(f"    s_lshl2_add_u32 {sr(sBL)}, {sr(sBL)}, 32")
            e(f"    s_add_u32 {sr(sPB)}, {sr(sBL)}, {sr(sPR)}")
        else:
            e(f"    s_lshl1_add_u32 {sr(sPW)}, {sr(sT0)}, {sr(sPR)}")
            e(f"    s_addc_u32 {sr(sPW + 1)}, {sr(sPR + 1)}, 0")
            e(f"    s_add_u32 {sr(sBL)}, {sr(sBL)}, 32")
            e(f"    s_lshl1_add_u32 {sr(sPB)}, {sr(sBL)}, {sr(sPR)}")
        e(f"    s_addc_u32 {sr(sPB + 1)}, {sr(sPR + 1)}, 0")
        e(f"    s_and_b32 {sr(sT1)}, {sr(sDBG)}, 127")
        e(f"    s_cselect_b32 {sr(sPW + 2)}, 0, {1 if sm else 2}")
        e(f"    s_cselect_b32 {sr(sPB + 2)}, 0, 2")
    e(f"    s_mov_b32 {sr(sPW + 3)}, 0x20000")
    e(f"    s_mov_b32 {sr(sPB + 3)}, 0x20000")
    e("    ; round in which this workgroup takes an arrival number for its group of 32, and that round's counter")
    e(f"    s_mul_i32 {sr(sTK)}, {sr(sT0)}, {pow(rot, -1, 32)}")
    e(f"    s_and_b32 {sr(sTK)}, {sr(sTK)}, 31")
    e(f"    s_mul_i32 {sr(sTB)}, {sr(sTK)}, {HW}")
    e(f"    s_add_u32 {sr(sTB)}, {sr(sTB)}, {16 * SLOT + 16 * HW}")
    e(f"    s_mul_i32 {sr(sTK)}, {sr(sTK)}, {T}")
    e(f"    s_add_u32 {sr(sTK)}, {sr(sTK)}, {t0m}")
    e(f"    s_cmp_ge_u32 {sr(sTK)}, {2 * NIT - (4 if eb else 5)}")
    e(f"    s_cselect_b32 {sr(sTK)}, 0x7fff, {sr(sTK)}")
    if eb or pk:
        e(f"    s_movk_i32 {sr(sT2)}, 0x7fff")
    e(f"    v_lshlrev_b32 {vr(vPo)}, 1, {vr(vLane)}")
    e(f"    v_mov_b32 {vr(vPg)}, 0")
    if slim:
        assert xl and law and th == "m4.m1.2.5" and rd + d2 < NR
        e(f"    s_mov_b32 {sr(sOWN)}, -3")
        e(f"    s_mov_b32 {sr(sST)}, 0")
        e(f"    v_subrev_u32 {vr(vPs)}, 16, {vr(vLane)}")
        e(f"    v_ashrrev_i32 {vr(vPs)}, 31, {vr(vPs)}")
    else:
        e(f"    v_mov_b32 {vr(vPs)}, 0")
    e(f"    v_mov_b32 {vr(vLds)}, {vr(vLin)}")
    e("    ; byte selectors of the probability operand: row lane&15 = (head, element)")
    e(f"    v_bfe_u32 {vr(vT)}, {vr(vLane)}, 3, 1")
    e(f"    v_mul_u32_u24 {vr(vT)}, 0x0202, {vr(vT)}")
    e(f"    v_add_u32 {vr(vT)}, 0x0100, {vr(vT)}")
    e(f"    v_xor_b32 {vr(vT)}, 0x0c0c, {vr(vT)}")
    e(f"    v_and_b32 {vr(vT + 1)}, 1, {vr(vLane)}")
    e(f"    v_lshlrev_b32 {vr(vT + 1)}, 4, {vr(vT + 1)}")
    e(f"    v_lshlrev_b32 {vr(vT)}, {vr(vT + 1)}, {vr(vT)}")
    e(f"    v_xor_b32 {vr(vT)}, 0x0c0c0c0c, {vr(vT)}")
    e(f"    v_bfe_u32 {vr(vT + 1)}, {vr(vLane)}, 1, 2")
    e(f"    v_mov_b32 {vr(vT + 2)}, 0x0c0c0c0c")
    for t in range(4):
        e(f"    v_cmp_eq_u32 vcc, {t}, {vr(vT + 1)}")
        e("    s_nop 1")
        e(f"    v_cndmask_b32 {vr(vSel + t)}, {vr(vT + 2)}, {vr(vT)}, vcc")
    e("    ; q split into two column-masked operands (column bit 1 selects the load of a pair)")
    e(f"    v_and_b32 {vr(vT)}, 2, {vr(vLane)}")
    e(f"    v_cmp_eq_u32 vcc, 0, {vr(vT)}")
    e("    s_nop 0")
    mark("setup")
    e(f"    s_waitcnt vmcnt({D - max(first, 1) + wx})")
    mark("data")
    for j in range(4):
        e(f"    v_cndmask_b32 {vr(vQ + 4 + j)}, {vr(vQ + j)}, 0, vcc")
    for j in range(4):
        e(f"    v_cndmask_b32 {vr(vQ + j)}, 0, {vr(vQ + j)}, vcc")
    e("    ; tree token score with its mask bias, valid in lanes 0 and 1 of chunk 0")
    e(f"    v_lshlrev_b32 {vr(vXT)}, 16, {vr(vXT)}")
    e(f"    v_sub_f32 {vr(vXT)}, 1.0, {vr(vXT)}")
    e(f"    v_mfma_f32_16x16x32_bf16 {vr(vD, 4)}, {vr(vKT, 4)}, {vr(vQ, 4)}, 0")
    e(f"    v_mul_f32 {vr(vXT)}, {f32(-1e9 / scale)}, {vr(vXT)}")
    e(f"    s_cmp_eq_u32 {sr(sCH)}, 0")
    e(f"    s_cselect_b64 vcc, 3, 0")
    e(f"    v_mov_b32 {vr(vMax)}, {NEG_INF}")
    e("    s_nop 4")
    e(f"    v_add_f32 {vr(vXT)}, {vr(vXT)}, {vr(vD)}")
    e(f"    v_mov_b32_dpp {vr(vT)}, {vr(vD + 1)} row_ror:12 {ALL}")
    e(f"    v_mov_b32_dpp {vr(vT + 1)}, {vr(vD + 2)} row_ror:8 {ALL}")
    e(f"    v_mov_b32_dpp {vr(vT + 2)}, {vr(vD + 3)} row_ror:4 {ALL}")
    e(f"    v_add_f32 {vr(vXT)}, {vr(vXT)}, {vr(vT)}")
    e(f"    v_add_f32 {vr(vT + 1)}, {vr(vT + 1)}, {vr(vT + 2)}")
    e(f"    v_add_f32 {vr(vXT)}, {vr(vXT)}, {vr(vT + 1)}")
    e(f"    v_cndmask_b32 {vr(vXT)}, {vr(vMax)}, {vr(vXT)}, vcc")
    e(f"    v_mov_b32 {vr(vMax)}, {vr(vXT)}")
    if trace:
        e("    s_mov_b32 m0, 0")
    if stamps:
        e(f"    s_mov_b32 {sr(sACC)}, 0")

    def dppctl(t, j):
        n = (4 * (t - j)) % 16
        c = "quad_perm:[0,1,2,3]" if n == 0 else f"row_ror:{n}"
        return f"{c} row_mask:0xf bank_mask:{1 << t:#x}"

    def red1(p):
        t = p % 4
        e(f"    v_mov_b32_dpp {vr(vXa)}, {vr(vD + 4 * t)} {dppctl(t, 0)}")
        e(f"    v_mov_b32_dpp {vr(vXb)}, {vr(vD + 4 * t + 1)} {dppctl(t, 1)}")

    def red2(p):
        t = p % 4
        e(f"    v_add_f32_dpp {vr(vXa)}, {vr(vD + 4 * t + 2)}, {vr(vXa)} {dppctl(t, 2)}")
        e(f"    v_add_f32_dpp {vr(vXb)}, {vr(vD + 4 * t + 3)}, {vr(vXb)} {dppctl(t, 3)}")
        if t == 3:
            e(f"    v_add_f32 {vr(vX + p // 4)}, {vr(vXa)}, {vr(vXb)}")

    def probes(ph, m, k):
        if amp.startswith("it") and k == 26:
            e(f"    s_cmp_lg_u32 {sr(sIT)}, {int(amp[2:])}")
            e(f"    s_cbranch_scc1 L_{ph}{m}_na")
            mark(amp)
            e(f"L_{ph}{m}_na:")
        if 0 <= ampfrom < 100 and k == 26:
            e(f"    s_cmp_lg_u32 {sr(sIT)}, {ampfrom}")
            e(f"    s_cbranch_scc1 L_{ph}{m}_nb")
            e(f"    s_memrealtime {sr(sTS + 4, 2)}")
            e(f"L_{ph}{m}_nb:")
        if trace and k == 26:
            e(f"    s_memrealtime {sr(sTR, 2)}")
        if trace and k == 24:
            e("    s_waitcnt lgkmcnt(0)")
            e(f"    v_writelane_b32 {vr(vTr)}, {sr(sTR)}, m0")
            e("    s_add_u32 m0, m0, 1")

    def control(ph, m, k):
        if slim:
            if k in (rd - d1, rd + d2):
                e(f"    v_add_u32 {vr(vPg)}, 1, {vr(vPg)}")
                e(f"    buffer_store_short {vr(vPg)}, {vr(vPo)}, {sr(sPW, 4)}, 0 offen")
            seq = [f"s_add_u32 {sr(sOWN)}, {sr(sOWN)}, 2",
                   f"v_cmp_lt_u32 vcc, {sr(sOWN)}, {vr(vPs)}",
                   f"s_bcnt1_i32_b32 {sr(sAH)}, vcc_lo",
                   f"v_cmp_gt_u32 vcc, {sr(sOWN)}, {vr(vPs)}",
                   f"s_bcnt0_i32_b32 {sr(sBH)}, vcc_lo",
                   f"v_readlane_b32 {sr(sBI)}, {vr(vPs)}, {sr(sBL)}",
                   f"s_add_i32 {sr(sAH)}, {sr(sAH)}, {sr(sBH)}",
                   f"s_add_i32 {sr(sAH)}, {sr(sAH)}, {sr(sBI)}",
                   f"s_max_i32 {sr(sAH)}, {sr(sAH)}, 12",
                   f"s_min_i32 {sr(sAH)}, {sr(sAH)}, 22",
                   f"s_mul_i32 {sr(sAH)}, {sr(sAH)}, 42",
                   f"s_lshr_b32 {sr(sNM)}, {sr(sAH)}, 7"]
            u0 = rd + D + 1 - NR
            j = k - u0
            assert u0 + 5 // per < rd and use == u0 + (len(seq) + per - 1) // per
            if j >= 0:
                for x in seq[j * per:(j + 1) * per]:
                    e("    " + x)
            if k == use:
                if stamps:
                    e(f"    s_add_u32 {sr(sACC)}, {sr(sACC)}, {sr(sNM)}")
                e(f"    s_cmp_lg_u32 {sr(sNM)}, {m + 3}")
                e(f"    s_cbranch_scc1 L_{ph}_pick")
                e(f"L_{ph}{m}_u:")
            if k == rd:
                e(f"    buffer_load_sshort {vr(vPs)}, {vr(vPo)}, {sr(sPR, 4)}, 0 offen sc1")
            if k == 25:
                e(f"    s_cmp_eq_u32 {sr(sIT)}, {sr(sTK)}")
                e(f"    s_cbranch_scc1 L_{ph}{m}_round")
                e(f"L_{ph}{m}_t:")
            probes(ph, m, k)
            return
        if sm:
            if k in (rd - d1, rd + d2):
                e(f"    v_add_u32 {vr(vPg)}, 1, {vr(vPg)}")
                e(f"    buffer_store_byte {vr(vPg)}, {vr(vPo)}, {sr(sPW, 4)}, 0 offen")
            if k == rd:
                e(f"    s_load_dwordx8 s[4:11], {sr(sPR, 2)}, 0 glc")
                e(f"    s_load_dword {sr(sBI)}, {sr(sPR, 2)}, {sr(sBL)} glc")
            if k == 24:
                if ph == "k":
                    e("    s_waitcnt lgkmcnt(0)")
                for j in range(4):
                    e(f"    v_sad_u8 {vr(vPs)}, s{4 + j}, 0, {vr(vPs) if j else 0}")
            if k == 25:
                for j in range(4, 8):
                    e(f"    v_sad_u8 {vr(vPs)}, s{4 + j}, 0, {vr(vPs)}")
            if k == use - 2:
                e(f"    v_readfirstlane_b32 {sr(sAH)}, {vr(vPs)}")
            if k == use - 1:
                e(f"    s_lshl_b32 {sr(sT0)}, {sr(sIT)}, 6")
                e(f"    s_sub_i32 {sr(sAH)}, {sr(sAH)}, {sr(sT0)}")
        if xl:
            if k in {(rd - d1) % NR, (rd + d2) % NR}:
                e(f"    v_add_u32 {vr(vPg)}, 1, {vr(vPg)}")
                e(f"    buffer_store_short {vr(vPg)}, {vr(vPo)}, {sr(sPW, 4)}, 0 offen")
            if k == use - 3:
                if d1 + d2 == NR:
                    own = sIT
                else:
                    own = sT0
                    assert rd >= d1
                    if rd + d2 >= NR:
                        e(f"    s_lshl_b32 {sr(sT0)}, {sr(sIT)}, 1")
                    else:
                        e(f"    s_lshl1_add_u32 {sr(sT0)}, {sr(sIT)}, -1")
                        e(f"    s_max_i32 {sr(sT0)}, {sr(sT0)}, 0")
                e(f"    v_cmp_lt_u32 vcc, {sr(own)}, {vr(vPs)}")
                e(f"    s_and_b32 {sr(sAH)}, vcc_lo, 0xffff")
                if pr:
                    e(f"    s_bitcmp1_b32 {sr(sAH)}, {sr(sHEAD)}")
                    e(f"    s_cselect_b32 {sr(sPT)}, {sr(sIT)}, 0")
                e(f"    s_bcnt1_i32_b32 {sr(sAH)}, {sr(sAH)}")
                e(f"    v_cmp_gt_u32 vcc, {sr(own)}, {vr(vPs)}")
                e(f"    s_and_b32 {sr(sBH)}, vcc_lo, 0xffff")
                e(f"    s_bcnt1_i32_b32 {sr(sBH)}, {sr(sBH)}")
                e(f"    v_readlane_b32 {sr(sBI)}, {vr(vPs)}, {sr(sBL)}")
        if not sm and not xl and k == ps:
            e(f"    v_add_u32 {vr(vPg)}, 1, {vr(vPg)}")
            e(f"    buffer_store_{'byte' if rl else 'short'} {vr(vPg)}, {vr(vPo)}, {sr(sPW, 4)}, 0 offen")
        if cft and k == rd + cfd:
            e(f"    buffer_store_short {vr(vPg)}, {vr(vPo)}, {sr(sPB if cft == 1 else sPW, 4)}, 0 offen")
        if rl and k == rd + rl:
            e(f"    buffer_store_byte {vr(vPg)}, {vr(vPo)}, {sr(sPW, 4)}, 0 offen offset:1")
        if not sm and not xl and k == use - 3:
            cnt = vPs
            if rl:
                cnt = vT + 3
                e(f"    v_and_b32 {vr(cnt)}, 0xff, {vr(vPs)}")
                e(f"    v_readlane_b32 {sr(sPT)}, {vr(vPs)}, {sr(sPN)}")
            e(f"    v_cmp_lt_u32 vcc, {sr(sIT)}, {vr(cnt)}")
            e(f"    s_bcnt1_i32_b32 {sr(sAH)}, vcc_lo")
            e(f"    v_cmp_gt_u32 vcc, {sr(sIT)}, {vr(cnt)}")
            e(f"    s_bcnt1_i32_b32 {sr(sBH)}, vcc_lo")
            e(f"    v_readlane_b32 {sr(sBI)}, {vr(vPs)}, {sr(sBL)}")
        if law and k == use - 1:
            e(f"    s_sext_i32_i16 {sr(sT1)}, {sr(sBI)}")
            e(f"    s_sub_i32 {sr(sAH)}, {sr(sAH)}, {sr(sBH)}")
            e(f"    s_add_i32 {sr(sAH)}, {sr(sAH)}, {sr(sT1)}")
            if ths:
                for n, t in enumerate(ths):
                    e(f"    s_cmp_gt_i32 {sr(sAH)}, {t}")
                    e(f"    s_cselect_b32 {sr(sNM)}, {n + 1}, {sr(sNM) if n else 0}")
            else:
                e(f"    s_cmp_gt_i32 {sr(sAH)}, {hi}")
                e(f"    s_cselect_b32 {sr(sNM)}, 2, 1")
                e(f"    s_cmp_lt_i32 {sr(sAH)}, {lo if table else -lo}")
                e(f"    s_cselect_b32 {sr(sNM)}, 0, {sr(sNM)}")
        if not law and k == use - 2:
            e(f"    s_mul_i32 {sr(sT0)}, {sr(sIT)}, 5")
            e(f"    s_add_u32 {sr(sT0)}, {sr(sT0)}, {sr(sHEAD)}")
            e(f"    s_and_b32 {sr(sT0)}, {sr(sT0)}, 15")
            e(f"    s_sext_i32_i16 {sr(sT1)}, {sr(sBI)}")
            if lu:
                e(f"    s_add_i32 {sr(sT1)}, {sr(sT1)}, {sr(sLV)}")
            e(f"    s_cmp_lt_i32 {sr(sT0)}, {sr(sT1)}")
            e(f"    s_cselect_b32 {sr(sNM)}, 2, 1")
            e(f"    s_add_i32 {sr(sT1)}, {sr(sT1)}, {sr(sT0)}")
        if not law and k == use - 1:
            e(f"    s_cmp_lt_i32 {sr(sT1)}, 0")
            e(f"    s_cselect_b32 {sr(sNM)}, 0, {sr(sNM)}")
            if rl:
                e(f"    s_lshr_b32 {sr(sPT)}, {sr(sPT)}, 8")
                e(f"    s_cmp_ge_u32 {sr(sPT)}, {sr(sIT)}")
                e(f"    s_cselect_b32 {sr(sPT)}, {sr(sIT)}, 0")
            if rl or pr:
                e(f"    s_add_u32 {sr(sT0)}, {sr(sIT)}, {rh}")
                e(f"    s_cmp_gt_u32 {sr(sPT)}, {sr(sHO)}")
                e(f"    s_cselect_b32 {sr(sHO)}, {sr(sT0)}, {sr(sHO)}")
                e(f"    s_addc_u32 {sr(sNM)}, {sr(sNM)}, 0")
                e(f"    s_min_u32 {sr(sNM)}, {sr(sNM)}, 2")
            if sm:
                e(f"    s_cmp_lt_i32 {sr(sAH)}, {lo if table else 32 - lo}")
            else:
                e(f"    s_cmp_gt_u32 {sr(sBH)}, {lo}")
            e(f"    s_cselect_b32 {sr(sNM)}, 0, {sr(sNM)}")
            if lu:
                e(f"    s_cselect_b32 {sr(sBH)}, {ld}, 0")
            if sm:
                e(f"    s_cmp_gt_i32 {sr(sAH)}, {hi if table else 32 + hi}")
            else:
                e(f"    s_cmp_gt_u32 {sr(sAH)}, {hi}")
            e(f"    s_cselect_b32 {sr(sNM)}, 2, {sr(sNM)}")
            if lu:
                e(f"    s_cselect_b32 {sr(sAH)}, {lu}, 0")
        if lu and k == use + 1:
            e(f"    s_and_b32 {sr(sT0)}, {sr(sIT)}, {dm}")
            e(f"    s_cselect_b32 {sr(sT0)}, 0, {sr(sLV)}")
            e(f"    s_min_i32 {sr(sT0)}, {sr(sT0)}, 1")
            e(f"    s_max_i32 {sr(sT0)}, {sr(sT0)}, -1")
            e(f"    s_sub_i32 {sr(sLV)}, {sr(sLV)}, {sr(sT0)}")
        if lu and k == use + 3:
            e(f"    s_add_i32 {sr(sLV)}, {sr(sLV)}, {sr(sAH)}")
            e(f"    s_sub_i32 {sr(sLV)}, {sr(sLV)}, {sr(sBH)}")
            e(f"    s_min_i32 {sr(sLV)}, {sr(sLV)}, {lmax}")
            e(f"    s_max_i32 {sr(sLV)}, {sr(sLV)}, {lmin}")
        if k == use:
            if stamps:
                e(f"    s_add_u32 {sr(sACC)}, {sr(sACC)}, {sr(sNM)}")
            e(f"    s_cmp_lg_u32 {sr(sNM)}, {m}")
            e(f"    s_cbranch_scc1 L_{ph}_pick")
            e(f"L_{ph}{m}_u:")
        if not sm and k == rd:
            e(f"    buffer_load_ushort {vr(vPs)}, {vr(vPo)}, {sr(sPR, 4)}, 0 offen sc1")
        if k == 25:
            e(f"    s_sub_u32 {sr(sT0)}, {sr(sIT)}, {sr(sTK)}")
            e(f"    s_cmp_lt_u32 {sr(sT0)}, {2 if eb else 4 if esc else 3}")
            e(f"    s_cbranch_scc1 L_{ph}{m}_round")
            e(f"L_{ph}{m}_t:")
        if pk and k == pk and not (pkv and ph == 'k'):
            e(f"    s_cmp_eq_u32 {sr(sIT)}, {sr(sT2)}")
            e(f"    s_cbranch_scc1 L_{ph}{m}_look")
            e(f"L_{ph}{m}_l:")
        if eb and k == eb:
            e(f"    s_cmp_eq_u32 {sr(sIT)}, {sr(sT2)}")
            e(f"    s_cbranch_scc1 L_{ph}{m}_bias")
            e(f"L_{ph}{m}_b:")
        probes(ph, m, k)

    order = (mid,) + tuple(m for m in range(NM) if m != mid)
    e("    ; ---------------- phase K: two loads share one accumulator, DPP adds gather 32 keys x 2 heads per register")
    for m in order:
        e(f".p2align {al if m == mid else 6}")
        e(f"L_k{m}:")
        for k in range(NR):
            p, g = k // 2, k % 2
            d = vr(vD + 4 * (p % 4), 4)
            e(f"    v_mfma_f32_16x16x32_bf16 {d}, {rg(k)}, {vr(vQ + 4 * g, 4)}, {d if g else 0}")
            if k == NR - D:
                e(f"    s_add_u32 {sr(sBASE)}, {sr(sBASE)}, 0x10000")
                e(f"    s_cmp_lg_u32 {sr(sIT)}, {NIT - 1}")
                e(f"    s_cbranch_scc1 L_k{m}_same")
                e(f"    s_mov_b64 {sr(sS, 2)}, {sr(sVB, 2)}")
                e(f"    v_mov_b32 {vr(vOff)}, {vr(vLin)}")
                e(f"L_k{m}_same:")
            setoff((k + D) % NR, sBASE)
            e(f"    s_waitcnt vmcnt({RK[m][k & 1] - 1})")
            load((k + D) % NR)
            if k >= 3 and k % 2 == 1:
                red1((k - 3) // 2)
            elif k >= 4:
                red2((k - 4) // 2)
            else:
                e("    s_nop 1")
            control("k", m, k)
        e(f"    s_add_u32 {sr(sIT)}, {sr(sIT)}, 1")
        e("    s_nop 0")
        red2(NR // 2 - 2)
        e("    s_nop 1")
        red1(NR // 2 - 1)
        e(f"    s_cmp_lg_u32 {sr(sIT)}, {NIT}")
        red2(NR // 2 - 1)
        e(f"    v_max3_f32 {vr(vMax)}, {vr(vMax)}, {vr(vX)}, {vr(vX + 1)}")
        e(f"    v_max3_f32 {vr(vMax)}, {vr(vMax)}, {vr(vX + 2)}, {vr(vX + 3)}")
        e(f"    ds_write_b128 {vr(vLds)}, {vr(vX, 4)}")
        e(f"    v_add_u32 {vr(vLds)}, {slot}, {vr(vLds)}")
        e(f"    s_cbranch_scc1 L_k{m}")
        if m != order[-1]:
            e("    s_branch L_mid")

    def expand(k, lane):
        e(f"    v_mov_b32_dpp {vr(vBc)}, {vr(vP)} row_newbcast:{lane} {ALL}")
        return [f"    v_perm_b32 {vr(vB + 4 * (k & 1) + t)}, {vr(vBc)}, {vr(vBc)}, {vr(vSel + t)}" for t in range(4)]

    e("L_mid:")
    mid0 = len(o)
    e("    ; chunk maximum per head (lane parity), tree token contribution, first probability operands")
    e(f"    v_mov_b32 {vr(vLds)}, {vr(vLin)}")
    e(f"    ds_read_b128 {vr(vX, 4)}, {vr(vLin)}")
    if clr == 2:
        clear()
    e(f"    buffer_load_dword {vr(vFl)}, off, {sr(sY, 4)}, 0 sc1")
    for c in ("quad_perm:[2,3,0,1]", "row_ror:4", "row_ror:8"):
        e(f"    v_max_f32_dpp {vr(vMax)}, {vr(vMax)}, {vr(vMax)} {c} {ALL}")
        if c != "row_ror:8":
            e("    s_nop 1")
    for sw in ("v_permlane16_swap_b32", "v_permlane32_swap_b32"):
        e(f"    v_mov_b32 {vr(vT)}, {vr(vMax)}")
        e("    s_nop 1")
        e(f"    {sw} {vr(vMax)}, {vr(vT)}")
        e(f"    v_max_f32 {vr(vMax)}, {vr(vMax)}, {vr(vT)}")
    e(f"    v_mul_f32 {vr(vMc)}, {sr(sC)}, {vr(vMax)}")
    e(f"    v_fma_f32 {vr(vXT)}, {vr(vXT)}, {sr(sC)}, -{vr(vMc)}")
    e(f"    v_exp_f32 {vr(vL)}, {vr(vXT)}")
    e("    s_waitcnt lgkmcnt(0)")
    e(f"    v_fma_f32 {vr(vE)}, {vr(vX)}, {sr(sC)}, -{vr(vMc)}")
    e(f"    v_exp_f32 {vr(vE)}, {vr(vE)}")
    e(f"    v_mov_b32_dpp {vr(vT + 1)}, {vr(vL)} quad_perm:[1,0,3,2] {ALL}")
    e(f"    v_cvt_pk_bf16_f32 {vr(vP)}, {vr(vL)}, {vr(vT + 1)}")
    e(f"    v_mov_b32_dpp {vr(vT)}, {vr(vE)} quad_perm:[1,0,3,2] {ALL}")
    e(f"    v_add_f32 {vr(vL)}, {vr(vL)}, {vr(vE)}")
    for x in expand(1, 0):
        e(x)
    e(f"    v_cvt_pk_bf16_f32 {vr(vP)}, {vr(vE)}, {vr(vT)}")
    e("    s_nop 0")
    e(f"    v_mfma_f32_16x16x32_bf16 {vr(vAcc, 4)}, {vr(vB + 4, 4)}, {vr(vVT, 4)}, 0")
    for x in expand(0, 0):
        e(x)
    for x in expand(1, 2):
        e(x)

    def pstage(k):
        s = k % 8
        if s == 0:
            e(f"    v_fma_f32 {vr(vE)}, {vr(vX + (k // 8 + 1) % 4)}, {sr(sC)}, -{vr(vMc)}")
        elif s == 1:
            e(f"    v_exp_f32 {vr(vE)}, {vr(vE)}")
        elif s == 2:
            e(f"    v_add_f32 {vr(vL)}, {vr(vL)}, {vr(vE)}")
        elif s == 3:
            e(f"    v_mov_b32_dpp {vr(vT)}, {vr(vE)} quad_perm:[1,0,3,2] {ALL}")
        elif s == 5:
            e(f"    v_cvt_pk_bf16_f32 {vr(vP)}, {vr(vE)}, {vr(vT)}")

    def pv(k):
        e(f"    v_mfma_f32_16x16x32_bf16 {vr(vAcc, 4)}, {vr(vB + 4 * (k & 1), 4)}, {rg(k)}, {vr(vAcc, 4)}")

    e("    ; ---------------- phase V: one MFMA per load, A = probabilities on a diagonal, B = four value rows")
    if tb:
        nmid = len(o) - mid0 - 1
        for k in range(NR - D):
            pv(k)
            perms = expand(k + 2, 2 * ((k + 2) % 8))
            pstage(k)
            for x in perms:
                e(x)
            control("v", 1, k)
        body = o[mid0:]
        del o[mid0:]
        gapn = len(body) // (NR - D)
        j = D
        for n, ln in enumerate(body):
            if n % gapn == 0 and j < NR:
                setoff(j, sBASE)
                e(f"    s_waitcnt vmcnt({tb - 1})")
                load(j)
                j += 1
            if "v_mfma" in ln and n > nmid:
                item = (int(ln.split("v[")[3].split(":")[0]) - ring) // 4
                assert item <= j - 2 - (tb - 1)
            e(ln)
        assert NR - D <= NR - 2 - (tb - 1)
        e("    s_branch L_v1_in")
    for m in order:
        e(f".p2align {al if m == mid else 6}")
        e(f"L_v{m}:")
        for k in range(NR):
            if tb and m == 1 and k == NR - D:
                e("L_v1_in:")
            pv(k)
            if k == NR - D:
                e(f"    s_add_u32 {sr(sBASE)}, {sr(sBASE)}, 0x10000")
            setoff((k + D) % NR, sBASE)
            e(f"    s_waitcnt vmcnt({RV[m][k & 1] - 1})")
            load((k + D) % NR)
            perms = expand(k + 2, 2 * ((k + 2) % 8))
            if k == 24:
                e("    s_waitcnt lgkmcnt(0)")
            if k == 17:
                e(f"    ds_read_b128 {vr(vX, 4)}, {vr(vLds)} offset:{slot}")
            pstage(k)
            for x in perms:
                e(x)
            control("v", m, k)
            if sa and k == sa - 1 and m == NM - 1:
                e(f"    s_cmp_eq_u32 {sr(sIT)}, {2 * NIT - 2}")
                e("    s_cbranch_scc1 L_soon")
            if sa and k == sa - 1 and m == 1 and bt < 99:
                e(f"    s_sext_i32_i16 {sr(sT0)}, {sr(sBI)}")
                e(f"    s_cmp_ge_i32 {sr(sT0)}, {bt}")
                e(f"    s_cselect_b32 {sr(sT0)}, {sr(sIT)}, 0")
                e(f"    s_cmp_eq_u32 {sr(sT0)}, {2 * NIT - 2}")
                e("    s_cbranch_scc1 L_soon")
            if k == s0 - 1 and not (sa and m == NM - 1 and use < sa):
                e(f"    s_cmp_eq_u32 {sr(sIT)}, {2 * NIT - 2}")
                e("    s_cbranch_scc1 L_last")
        e(f"    s_add_u32 {sr(sIT)}, {sr(sIT)}, 1")
        e(f"    v_add_u32 {vr(vLds)}, {slot}, {vr(vLds)}")
        e(f"    s_branch L_v{m}")

    vW, vS2, vGa, vOa, vG = vXa, vXb, vXT, vFl, vX
    e("    ; ---------------- remaining loads as slots come free, then the last block")
    if sh < 0:
        e(".p2align 6")
    else:
        e(".p2align 10")
        if sh:
            e(f".fill {sh * 8}, 4, 0xbf800000")

    def opening(s):
        for j in range(s + D - NR, s):
            setoff(j, sBASE)
            load(j)
        for k in range(s, NR):
            e(f"    s_waitcnt vmcnt({NR - 1})")
            pv(k)
            setoff(k, sBASE)
            load(k)
            perms = expand(k + 2, 2 * ((k + 2) % 8))
            if k == 24:
                e("    s_waitcnt lgkmcnt(0)")
            if k == 17:
                e(f"    ds_read_b128 {vr(vX, 4)}, {vr(vLds)} offset:{slot}")
            pstage(k)
            for x in perms:
                e(x)

    if sa:
        assert sa < s0
        e("    ; entry from the widest copy, six steps before the end of the block")
        e("L_soon:")
        opening(sa)
        e("    s_branch L_drain")
        if pd >= 0:
            e(".p2align 3")
            if pd:
                e("    s_nop 0")
    e("L_last:")
    opening(s0)
    if sa:
        e("L_drain:")
    e(f"    v_readfirstlane_b32 {sr(sT0)}, {vr(vFl)}")
    e(f"    s_cmp_eq_u32 {sr(sT0)}, 0")
    e("    s_cbranch_scc1 L_flag")
    e("    ; last block: probability operands run up to eight loads ahead; the arrival number is taken on the way")
    e("L_ready:")
    lsum = []
    for c in ("quad_perm:[2,3,0,1]", "row_ror:4", "row_ror:8"):
        lsum.append([f"    v_add_f32_dpp {vr(vL)}, {vr(vL)}, {vr(vL)} {c} {ALL}"])
    for sw in ("v_permlane16_swap_b32", "v_permlane32_swap_b32"):
        lsum.append([f"    v_mov_b32 {vr(vT + 1)}, {vr(vL)}"])
        lsum.append([f"    {sw} {vr(vL)}, {vr(vT + 1)}", f"    v_add_f32 {vr(vL)}, {vr(vL)}, {vr(vT + 1)}"])
    lsum.append([f"    v_min_u32 {vr(vMc)}, -2, {vr(vMc)}", f"    v_min_u32 {vr(vL)}, -2, {vr(vL)}"])
    setup = [
        [f"    v_lshrrev_b32 {vr(vT + 2)}, 5, {vr(vLane)}", f"    v_and_b32 {vr(vT + 3)}, 15, {vr(vLane)}"],
        [f"    v_mul_u32_u24 {vr(vGa)}, {SLOT}, {vr(vT + 3)}", f"    v_lshl_add_u32 {vr(vGa)}, {vr(vT + 2)}, 3, {vr(vGa)}"],
        [f"    v_lshlrev_b32 {vr(vMax)}, 8, {vr(vT + 2)}", f"    v_lshl_add_u32 {vr(vMax)}, {vr(vT + 3)}, 4, {vr(vMax)}"],
        [f"    v_bfe_u32 {vr(vT + 3)}, {vr(vLane)}, 4, 1", f"    v_lshl_add_u32 {vr(vOa)}, {vr(vT + 3)}, 3, {vr(vMax)}"],
        [f"    s_lshl_b32 {sr(sT0)}, {sr(sHEAD)}, 9", f"    s_add_u32 {sr(sS)}, {sr(sOUT)}, {sr(sT0)}",
         f"    s_addc_u32 {sr(sS + 1)}, {sr(sOUT + 1)}, 0", f"    s_movk_i32 {sr(sS + 2)}, 512"],
        [f"    v_lshlrev_b32 {vr(vT + 2)}, 3, {vr(vLane)}"],
    ]
    if fa:
        setup[4].pop()
    late = []
    if gm & 2:
        late = [f"    v_lshrrev_b32 {vr(vT)}, 5, {vr(vLane)}", f"    v_and_b32 {vr(vT + 1)}, 15, {vr(vLane)}",
                f"    v_lshlrev_b32 {vr(vOa)}, 8, {vr(vT)}", f"    v_lshl_add_u32 {vr(vOa)}, {vr(vT + 1)}, 4, {vr(vOa)}",
                f"    v_bfe_u32 {vr(vT)}, {vr(vLane)}, 4, 1", f"    v_lshl_add_u32 {vr(vOa)}, {vr(vT)}, 3, {vr(vOa)}"] + setup[4]
        del setup[2:5]
        if gm & 4:
            late[2:2] = [f"    v_mul_u32_u24 {vr(vGa)}, {SLOT}, {vr(vT + 1)}", f"    v_lshl_add_u32 {vr(vGa)}, {vr(vT)}, 3, {vr(vGa)}"]
            late += [f"    s_movk_i32 {sr(sTAB + n)}, {3 * n * SLOT}" for n in range(1, 6)]
            del setup[0:2]
    if ahead:
        sets = [vD, vD + 4, vD + 8, vD + 12, vQ, vQ + 4, vKT, vVT]
        pregs = [vP, vXa, vXb, vPg]
        side = []
        for g in (1, 2, 3):
            side.append([f"    v_fma_f32 {vr(vE)}, {vr(vX + g)}, {sr(sC)}, -{vr(vMc)}"])
            side.append([f"    v_exp_f32 {vr(vE)}, {vr(vE)}"])
            side.append([f"    v_mov_b32_dpp {vr(vT)}, {vr(vE)} quad_perm:[1,0,3,2] {ALL}", f"    v_add_f32 {vr(vL)}, {vr(vL)}, {vr(vE)}"])
            side.append([f"    v_cvt_pk_bf16_f32 {vr(pregs[g])}, {vr(vE)}, {vr(vT)}"])
        side += [a + (setup.pop(0) if setup else []) for a in lsum]
        lsum = []
        nxt = 2
        for k in range(NR):
            e(f"    s_waitcnt vmcnt({NR - 1 - k})")
            e(f"    v_mfma_f32_16x16x32_bf16 {vr(vAcc, 4)}, {vr(sets[k % 8], 4)}, {rg(k)}, {vr(vAcc, 4)}")
            if k == ea:
                e(f"    s_mov_b32 {sr(sAT)}, 1")
                e(f"    s_atomic_add {sr(sAT)}, {sr(sW, 2)}, {16 * SLOT} glc")
            firstx = True
            while nxt < NR and (nxt - 2) * ahead // 29 <= k:
                assert nxt - 8 <= k <= nxt - 2 and k >= 4 * (nxt // 8)
                e(f"    v_mov_b32_dpp {vr(vBc)}, {vr(pregs[nxt // 8])} row_newbcast:{2 * (nxt % 8)} {ALL}")
                if firstx and side:
                    for x in side.pop(0):
                        e(x)
                firstx = False
                for t in range(4):
                    e(f"    v_perm_b32 {vr(sets[nxt % 8] + t)}, {vr(vBc)}, {vr(vBc)}, {vr(vSel + t)}")
                nxt += 1
        assert nxt == NR and not side
    for k in range(0 if ahead else NR):
        e(f"    s_waitcnt vmcnt({NR - 1 - k})")
        pv(k)
        if k == ea:
            e(f"    s_mov_b32 {sr(sAT)}, 1")
            e(f"    s_atomic_add {sr(sAT)}, {sr(sW, 2)}, {16 * SLOT} glc")
        perms = expand(k + 2, 2 * ((k + 2) % 8)) if k + 2 < NR else []
        if k < 24:
            pstage(k)
        if setup:
            for x in setup.pop(0):
                e(x)
        if k >= 20 and lsum:
            for x in lsum.pop(0):
                e(x)
        for x in perms:
            e(x)
    assert not lsum and not setup
    if stamps:
        e(f"    s_memrealtime {sr(sTS + 2, 2)}")
    mark("end")
    if ampfrom == 100:
        e(f"    s_memrealtime {sr(sTS + 4, 2)}")
    e("    s_waitcnt lgkmcnt(0)")
    e(f"    s_cmp_eq_u32 {sr(sAT)}, 15")
    def clampacc():
        for j in range(4):
            e(f"    v_min_u32 {vr(vAcc + j)}, -2, {vr(vAcc + j)}")

    if not em and not pf:
        e("    s_nop 5")
        clampacc()

    def put(pol):
        e(f"    buffer_store_dwordx4 {vr(vAcc, 4)}, {vr(vLin)}, {sr(sW, 4)}, {sr(sREC)} offen{pol}")
        e("    s_mov_b64 exec, 0xffff")
        e(f"    buffer_store_dwordx2 {vr(vML, 2)}, {vr(vT + 2)}, {sr(sW, 4)}, {sr(sREC)} offen offset:1024{pol}")

    def early_put(pol):
        e("    s_mov_b64 exec, 0xffff")
        e(f"    buffer_store_dwordx2 {vr(vML, 2)}, {vr(vT + 2)}, {sr(sW, 4)}, {sr(sREC)} offen offset:1024{pol}")
        e("    s_mov_b64 exec, -1")
        e("    s_nop 1")
        clampacc()
        e(f"    buffer_store_dwordx4 {vr(vAcc, 4)}, {vr(vLin)}, {sr(sW, 4)}, {sr(sREC)} offen{pol}")

    def leave():
        if stamps or amp and ampwg != -3:
            e("    s_mov_b64 exec, -1")
            e("    s_branch L_fin")
        else:
            e("    s_endpgm")

    if near:
        e("    s_cbranch_scc1 L_merge")
        if em:
            e("    s_nop 4")
            clampacc()
        if pf:
            early_put(" sc1")
        else:
            put(" sc1")
        leave()
        if pm >= 0:
            e(".p2align 3")
            if pm:
                e("    s_nop 0")
        e("L_merge:")
    else:
        e("    s_cbranch_scc0 L_put")
    e("    ; last arrival of the head: its own record is read back by this wave only")

    def gather(z):
        e(f"    buffer_load_dwordx2 {vr(vG + 2 * z, 2)}, {vr(vGa)}, {sr(sW, 4)}, 0 offen offset:1024 sc1")

    if em:
        e("    s_mov_b64 exec, 0xffff")
        e(f"    buffer_store_dwordx2 {vr(vML, 2)}, {vr(vT + 2)}, {sr(sW, 4)}, {sr(sREC)} offen offset:1024")
        e("    s_mov_b64 exec, -1")
        if em == 1:
            gather(0)
        e(f"    s_nop {0 if em == 1 else 1}")
        clampacc()
        e(f"    buffer_store_dwordx4 {vr(vAcc, 4)}, {vr(vLin)}, {sr(sW, 4)}, {sr(sREC)} offen")
    else:
        if pf:
            early_put("")
        else:
            put("")
            e("    s_mov_b64 exec, -1")
        for _ in range(dly):
            e("    s_nop 7")
            e("    s_nop 7")
        if dbl != 1:
            for x in late:
                e(x)
            late = []
        if ack >= 0:
            e(f"    s_waitcnt vmcnt({ack})")
    e("    ; merge the 16 records once none holds the fill pattern any more")

    def fetch(z):
        if em == 1:
            e("L_data:")
        else:
            gather(z)
        for i in range(16):
            so = sr(sO)
            if gm & 4:
                so = sr(sTAB + i // 3) if i >= 3 else "0"
            elif i % 3 == 0:
                e(f"    s_movk_i32 {sr(sO)}, {i * SLOT}")
            e(f"    buffer_load_dwordx4 {rg(16 * z + i)}, {vr(vLin)}, {sr(sW, 4)}, {so} offen offset:{(i % 3) * SLOT} sc1")

    def merge(z, younger, again):
        g = vG + 2 * z
        e(f"    s_waitcnt vmcnt({16 + younger})")
        e(f"    v_max_f32_dpp {vr(vMax)}, {vr(g)}, {vr(g)} row_ror:1 {ALL}")
        e(f"    v_max_u32 {vr(vT)}, {vr(g)}, {vr(g + 1)}")
        e(f"    v_cmp_eq_u32 vcc, -1, {vr(vT)}")
        e(f"    v_max_f32_dpp {vr(vMax)}, {vr(vMax)}, {vr(vMax)} row_ror:2 {ALL}")
        e(f"    s_cbranch_vccnz {again}")
        e("    s_nop 0")
        e(f"    v_max_f32_dpp {vr(vMax)}, {vr(vMax)}, {vr(vMax)} row_ror:4 {ALL}")
        e("    s_nop 1")
        e(f"    v_max_f32_dpp {vr(vMax)}, {vr(vMax)}, {vr(vMax)} row_ror:8 {ALL}")
        e(f"    v_sub_f32 {vr(vW)}, {vr(g)}, {vr(vMax)}")
        e(f"    v_exp_f32 {vr(vW)}, {vr(vW)}")
        e("    s_nop 0")
        e(f"    v_mul_f32 {vr(vS2)}, {vr(g + 1)}, {vr(vW)}")
        extra = [f"    v_add_f32_dpp {vr(vS2)}, {vr(vS2)}, {vr(vS2)} row_ror:{n} {ALL}" for n in (1, 2, 4, 8)]
        if not fa:
            extra.append(f"    v_rcp_f32 {vr(vS2)}, {vr(vS2)}")
        for i in range(16):
            if fa:
                if i in (0, fa, 2 * fa):
                    e(f"    s_waitcnt vmcnt({(16 - fa - i if i < 2 * fa else 0) + younger})")
                if i == fa:
                    e(f"    v_rcp_f32 {vr(vS2)}, {vr(vS2)}")
                if i == 2 * fa:
                    e(f"    s_movk_i32 {sr(sS + 2)}, 512")
            elif i % wq == 0:
                e(f"    s_waitcnt vmcnt({16 - wq - i + younger})")
            op = "v_mul_f32_dpp" if i == 0 else "v_fmac_f32_dpp"
            for j in range(4):
                e(f"    {op} {vr(vAcc + j)}, {vr(vW)}, {vr(ring + 64 * z + 4 * i + j)} row_newbcast:{i} {ALL}")
            if extra:
                e(extra.pop(0))
        e(f"    v_cmp_u_f32 vcc, {vr(vAcc)}, {vr(vAcc + 1)}")
        e(f"    v_cmp_u_f32 {sr(sAH, 2)}, {vr(vAcc + 2)}, {vr(vAcc + 3)}")
        for j in range(4):
            e(f"    v_mul_f32 {vr(vAcc + j)}, {vr(vAcc + j)}, {vr(vS2)}")
        e(f"    s_or_b64 vcc, vcc, {sr(sAH, 2)}")
        e(f"    v_cvt_pk_bf16_f32 {vr(vML)}, {vr(vAcc)}, {vr(vAcc + 1)}")
        e(f"    v_cvt_pk_bf16_f32 {vr(vML + 1)}, {vr(vAcc + 2)}, {vr(vAcc + 3)}")
        e(f"    s_cbranch_scc1 L_nan{z}")

    def nancheck(z, again):
        e(f"L_nan{z}:")
        r0 = ring + 64 * z
        e(f"    v_max_u32 {vr(vT)}, {vr(r0)}, {vr(r0 + 1)}")
        for r in range(2, 64, 2):
            e(f"    v_max3_u32 {vr(vT)}, {vr(vT)}, {vr(r0 + r)}, {vr(r0 + r + 1)}")
        e(f"    v_cmp_eq_u32 vcc, -1, {vr(vT)}")
        e(f"    s_cbranch_vccnz {again}")
        e("    s_branch L_out")

    if dbl:
        fetch(0)
        for _ in range(gap):
            e("    s_nop 15")
        if gm & 1:
            e("    s_waitcnt vmcnt(17)")
        for x in late:
            e(x)
        e("L_get1:")
        fetch(1)
        merge(0, 17, "L_get0")
    else:
        if em != 1:
            e("L_get0:")
        fetch(0)
        merge(0, 0, "L_get0")
    e("L_out:")
    e(f"    buffer_store_dwordx2 {vr(vML, 2)}, {vr(vOa)}, {sr(sS, 4)}, 0 offen {of}".rstrip())
    if amp:
        e("L_fin:")
        e("    s_waitcnt vmcnt(0)")
        mark("fin")
        if ampwg >= 0:
            e(f"    s_cmp_lg_u32 s2, {ampwg}")
            e("    s_cbranch_scc1 L_end")
        e("    s_waitcnt lgkmcnt(0)")
        e(f"    s_sub_u32 {sr(sT0)}, {sr(sTS + 2)}, {sr(sTS + 4 if ampfrom >= 0 else sTS)}")
        e(f"    s_sub_i32 {sr(sT0)}, {sr(sT0)}, {ampbase}")
        e(f"    s_max_i32 {sr(sT0)}, {sr(sT0)}, 0")
        e(f"    s_min_i32 {sr(sT0)}, {sr(sT0)}, 1000")
        if ampwg <= -2:
            e(f"    s_add_u32 {sr(sT0)}, {sr(sT0)}, 0x400000")
            e(f"    s_mov_b32 {sr(sT1)}, {sr(sT0)}")
            e(f"    s_atomic_add {sr(sT1)}, {sr(sDBG, 2)}, 64 glc")
            e("    s_waitcnt lgkmcnt(0)")
            e(f"    s_add_u32 {sr(sT0)}, {sr(sT0)}, {sr(sT1)}")
            e(f"    s_lshr_b32 {sr(sT1)}, {sr(sT0)}, 22")
            e(f"    s_cmp_lg_u32 {sr(sT1)}, {256 if ampwg == -2 else 16}")
            e("    s_cbranch_scc1 L_end")
            e(f"    s_and_b32 {sr(sT0)}, {sr(sT0)}, 0x3fffff")
        e(f"    s_mul_i32 {sr(sT0)}, {sr(sT0)}, {ampx}")
        if ampwg <= -2:
            e(f"    s_lshr_b32 {sr(sT0)}, {sr(sT0)}, {8 if ampwg == -2 else 4}")
        e(f"    s_add_u32 {sr(sTS)}, {sr(sTS)}, {sr(sT0)}")
        e(f"    s_add_u32 {sr(sTS)}, {sr(sTS)}, 10000")
        e("L_spin:")
        e(f"    s_memrealtime {sr(sTS + 2, 2)}")
        e("    s_waitcnt lgkmcnt(0)")
        e(f"    s_sub_u32 {sr(sT0)}, {sr(sTS + 2)}, {sr(sTS)}")
        e(f"    s_cmp_lt_i32 {sr(sT0)}, 0")
        e("    s_cbranch_scc1 L_spin")
    if stamps:
        e("L_fin:")
        e("    s_waitcnt vmcnt(0)")
        e(f"    s_memrealtime {sr(sTS + 4, 2)}")
        e(f"    s_lshl_b32 {sr(sT0)}, s2, 5")
        e(f"    s_add_u32 {sr(sW)}, {sr(sWS)}, 0x100000")
        e(f"    s_addc_u32 {sr(sW + 1)}, {sr(sWS + 1)}, 0")
        e(f"    s_mov_b32 {sr(sW + 2)}, 0x100000")
        e("    s_waitcnt lgkmcnt(0)")
        e(f"    s_mov_b32 {sr(sTS + 6)}, {sr(sACC)}")
        e(f"    s_mov_b32 {sr(sTS + 7)}, {sr(sACC)}")
        if trace:
            e(f"    s_lshl_b32 {sr(sT1)}, s2, 9")
            e(f"    s_add_u32 {sr(sT1)}, {sr(sT1)}, 0x40000")
            e(f"    v_lshlrev_b32 {vr(vT)}, 2, {vr(vLane)}")
            e(f"    buffer_store_dword {vr(vTr)}, {vr(vT)}, {sr(sW, 4)}, {sr(sT1)} offen")
        for k in range(8):
            e(f"    v_mov_b32 {vr(ring + k)}, {sr(sTS + k)}")
        e("    s_mov_b64 exec, 1")
        e(f"    buffer_store_dwordx4 {vr(ring, 4)}, off, {sr(sW, 4)}, {sr(sT0)}")
        e(f"    buffer_store_dwordx4 {vr(ring + 4, 4)}, off, {sr(sW, 4)}, {sr(sT0)} offset:16")
    e("L_end:")
    e("    s_endpgm")

    if dbl:
        e(".p2align 3")
        if pq:
            e("    s_nop 0")
        e("L_get0:")
        fetch(0)
        merge(1, 17, "L_get1")
        e("    s_branch L_out")
    if em == 1:
        e("L_get0:")
        gather(0)
        e("    s_branch L_data")
    if not near:
        e("L_put:")
        put(" sc1")
        leave()
    e("    ; a NaN came out: fetch again if a record still held the fill pattern, otherwise it is the result")
    nancheck(0, "L_get0")
    if dbl:
        nancheck(1, "L_get1")
    e("    ; the counters were not yet reported as cleared when sampled: poll the flag")
    e("L_flag:")
    e(f"    buffer_load_dword {vr(vFl)}, off, {sr(sY, 4)}, 0 sc1")
    e("    s_waitcnt vmcnt(0)")
    e(f"    v_readfirstlane_b32 {sr(sT0)}, {vr(vFl)}")
    e(f"    s_cmp_eq_u32 {sr(sT0)}, 0")
    e("    s_cbranch_scc1 L_flag")
    e("    s_branch L_ready")
    e("    ; workgroup 256 clears the 16 + 32 counters and then raises the flag")
    e("L_extra:")
    e(f"    s_cmp_lg_u32 s2, {NWG}")
    e("    s_cbranch_scc1 L_end")
    e(f"    v_mul_u32_u24 {vr(vT)}, {HW}, {vr(vLane)}")
    e(f"    v_mov_b32 {vr(vT + 1)}, 0")
    e(f"    v_mov_b32 {vr(vT + 2)}, 1")
    e(f"    s_mov_b32 {sr(sW + 2)}, {48 * HW}")
    e(f"    s_mov_b32 {sr(sW + 3)}, 0x20000")
    e(f"    s_mov_b32 {sr(sY + 2)}, 4")
    e(f"    s_mov_b32 {sr(sY + 3)}, 0x20000")
    e(f"    s_mov_b32 {sr(sT0)}, {16 * SLOT}")
    e("    s_waitcnt lgkmcnt(0)")
    e(f"    s_mov_b64 {sr(sW, 2)}, {sr(sWS, 2)}")
    e(f"    s_mov_b64 {sr(sY, 2)}, {sr(sDBG, 2)}")
    e(f"    buffer_store_dword {vr(vT + 1)}, {vr(vT)}, {sr(sW, 4)}, {sr(sT0)} offen sc1")
    e("    s_mov_b64 exec, 1")
    e("    s_waitcnt vmcnt(0)")
    e(f"    buffer_store_dword {vr(vT + 2)}, off, {sr(sY, 4)}, 0 sc1")
    e("    s_endpgm")
    for ph in ("k", "v"):
        e(f"L_{ph}_pick:")
        for m in order[:-1]:
            e(f"    s_cmp_eq_u32 {sr(sNM)}, {m + 3 * bool(slim)}")
            e(f"    s_cbranch_scc1 L_{ph}{m}_u")
        e(f"    s_branch L_{ph}{order[-1]}_u")
    e("    ; three consecutive iterations of the round's workgroups: sample the flag, take the arrival number,")
    e("    ; publish the group's bias, which is added to (peers ahead - peers behind) when a copy is picked")
    kpv, memv, offv, pk0 = kp, mem, off, pk
    for ph in ("k", "v"):
        kp = kpk if ph == "k" and kpk is not None else kpv
        mem = memk if ph == "k" and memk is not None else memv
        off = offk if ph == "k" and offk is not None else offv
        pk = 0 if ph == "k" and pkv else pk0
        for m in order:
            e(f"L_{ph}{m}_round:")
            if slim:
                e(f"    s_mov_b32 {sr(sT0)}, {sr(sST)}")
                e(f"    s_add_u32 {sr(sST)}, {sr(sST)}, 1")
                e(f"    s_add_u32 {sr(sTK)}, {sr(sTK)}, 1")
            if esc:
                e(f"    s_cmp_eq_u32 {sr(sT0)}, 3")
                e(f"    s_cbranch_scc1 L_{ph}{m}_far")
            if not eb:
                e(f"    s_cmp_eq_u32 {sr(sT0)}, 2")
                e(f"    s_cbranch_scc1 L_{ph}{m}_bias")
            e(f"    s_cmp_eq_u32 {sr(sT0)}, 1")
            e(f"    s_cbranch_scc1 L_{ph}{m}_take")
            e(f"    buffer_load_dword {vr(vFl)}, off, {sr(sY, 4)}, 0 sc1")
            e(f"    s_branch L_{ph}{m}_t")
            e(f"L_{ph}{m}_take:")
            e(f"    v_readfirstlane_b32 {sr(sT0)}, {vr(vFl)}")
            e(f"    s_cmp_eq_u32 {sr(sT0)}, 0")
            e(f"    s_cselect_b32 {sr(sTK)}, 0x7fff, {sr(sTK)}")
            e(f"    s_cbranch_scc1 L_{ph}{m}_t")
            if eb or pk:
                e(f"    s_add_u32 {sr(sT2)}, {sr(sIT)}, 1")
            e(f"    s_mov_b32 {sr(sAT)}, 1")
            e(f"    s_atomic_add {sr(sAT)}, {sr(sWS, 2)}, {sr(sTB)} glc")
            e(f"    s_branch L_{ph}{m}_t")
            if pk:
                e(f"L_{ph}{m}_look:")
                e(f"    s_mov_b32 {sr(sA2)}, 0")
                e(f"    s_atomic_add {sr(sA2)}, {sr(sWS, 2)}, {sr(sTB)} glc")
                e(f"    s_branch L_{ph}{m}_l")
            e(f"L_{ph}{m}_bias:")
            if slim:
                e(f"    s_movk_i32 {sr(sTK)}, 0x7fff")
            e("    s_waitcnt lgkmcnt(0)")
            e(f"    s_lshl1_add_u32 {sr(sT0)}, {sr(sAT)}, -7")
            if esc:
                e(f"    s_mov_b32 {sr(sAT)}, 0")
                e(f"    s_atomic_add {sr(sAT)}, {sr(sWS, 2)}, {sr(sTB)} glc")
            sched = i2 and ph == "v"
            if sched:
                e(f"    s_cmp_lt_u32 {sr(sIT)}, {i2}")
                e(f"    s_cselect_b32 {sr(sT1)}, {kpk}, {kp}")
                e(f"    s_cselect_b32 {sr(sAT)}, {memk}, {mem}")
                e(f"    s_mul_i32 {sr(sT0)}, {sr(sT0)}, {sr(sT1)}")
            elif kp != 1:
                e(f"    s_mul_i32 {sr(sT0)}, {sr(sT0)}, {kp}")
            if pk:
                e(f"    s_sub_i32 {sr(sT1)}, 8, {sr(sA2)}")
                e(f"    s_min_i32 {sr(sT1)}, {sr(sT1)}, {kmax}")
                e(f"    s_mul_i32 {sr(sT1)}, {sr(sT1)}, {ke}")
                e(f"    s_sub_i32 {sr(sT0)}, {sr(sT0)}, {sr(sT1)}")
            if off:
                e(f"    s_add_i32 {sr(sT0)}, {sr(sT0)}, {off}")
            if dn != 1:
                e(f"    s_mul_i32 {sr(sT1)}, {sr(sT0)}, {dn}")
                if dh:
                    e(f"    s_ashr_i32 {sr(sT1)}, {sr(sT1)}, 1")
                e(f"    s_min_i32 {sr(sT0)}, {sr(sT0)}, {sr(sT1)}")
            if mem:
                e(f"    s_sext_i32_i16 {sr(sT1)}, {sr(sBI)}")
                if memp:
                    e(f"    s_max_i32 {sr(sAT)}, {sr(sT1)}, 0")
                    e(f"    s_min_i32 {sr(sAT)}, {sr(sAT)}, {pmax}")
                    e(f"    s_mul_i32 {sr(sAT)}, {sr(sAT)}, {memp}")
                e(f"    s_min_i32 {sr(sT1)}, {sr(sT1)}, 0")
                e(f"    s_max_i32 {sr(sT1)}, {sr(sT1)}, -16")
                e(f"    s_mul_i32 {sr(sT1)}, {sr(sT1)}, {sr(sAT) if sched else mem}")
                e(f"    s_cmp_lt_i32 {sr(sT0)}, 0")
                e(f"    s_cselect_b32 {sr(sT1)}, {sr(sT1)}, {sr(sAT) if memp else 0}")
                e(f"    s_add_i32 {sr(sT0)}, {sr(sT0)}, {sr(sT1)}")
            e(f"    s_add_i32 {sr(sT0)}, {sr(sT0)}, 2")
            e(f"    s_ashr_i32 {sr(sT0)}, {sr(sT0)}, 2")
            e(f"    v_mov_b32 {vr(vT + 2)}, {sr(sT0)}")
            if xl:
                e(f"    v_lshlrev_b32 {vr(vT + 3)}, 7, {vr(vLane)}")
            e(f"    buffer_store_short {vr(vT + 2)}, {vr(vT + 3 if xl else vPo)}, {sr(sPB, 4)}, 0 offen")
            e(f"    s_branch L_{ph}{m}_{'b' if eb else 't'}")
            if esc:
                e(f"L_{ph}{m}_far:")
                e("    s_waitcnt lgkmcnt(0)")
                e(f"    s_cmp_ge_u32 {sr(sAT)}, 8")
                e(f"    s_cbranch_scc1 L_{ph}{m}_t")
                e(f"    v_mov_b32 {vr(vT + 2)}, {-esc}")
                e(f"    buffer_store_short {vr(vT + 2)}, {vr(vPo)}, {sr(sPB, 4)}, 0 offen")
                e(f"    s_branch L_{ph}{m}_t")
    e("L_code_end:")
    e('.section .rodata,"a"')
    e(".p2align 6")
    e(f".amdhsa_kernel {NAME}_kernel")
    e(f"  .amdhsa_next_free_vgpr {nv}")
    e(f"  .amdhsa_next_free_sgpr {100 if stamps or mini or table or amp else 78}")
    e(f"  .amdhsa_accum_offset {(nv + 3) // 4 * 4}")
    e("  .amdhsa_group_segment_fixed_size 0")
    e("  .amdhsa_kernarg_size 72")
    e("  .amdhsa_user_sgpr_count 2")
    e("  .amdhsa_user_sgpr_kernarg_segment_ptr 1")
    e("  .amdhsa_system_sgpr_workgroup_id_x 1")
    e("  .amdhsa_float_denorm_mode_32 3")
    e(".end_amdhsa_kernel")
    return "\n".join(o) + "\n"


if __name__ == "__main__":
    for spec in sys.argv[1:]:
        name, _, kv = spec.partition(":")
        kw = {}
        for p in filter(None, kv.split(",")):
            k, v = p.split("=")
            kw[k] = v.replace("+", " ") if k in ("RK", "RV", "cs", "amp", "fl", "th", "of") else int(v)
        path = name if name.endswith(".s") else f"var/{name}.s"
        open(path, "w").write(gen(**kw))
```
